```python
import torch

def _softmax(x, axis=-1):
    return torch.softmax(x, dim=axis)
def _gelu(x):
    return torch.nn.functional.gelu(x, approximate="tanh")
def _silu(x):
    return torch.nn.functional.silu(x)
def _sigmoid(x):
    return torch.sigmoid(x)
def _layernorm(x, axis=-1, eps=1e-5):
    m = x.mean(dim=axis, keepdim=True)
    v = x.var(dim=axis, keepdim=True, unbiased=False)
    return (x - m) / torch.sqrt(v + eps)
def _scatter_add(tgt, idx, src, axis=0):
    return tgt.clone().index_add_(axis, idx, src)
def _segment_sum(src, seg, n):
    out = torch.zeros((n,) + src.shape[1:], dtype=src.dtype)
    return out.index_add_(0, seg, src)
def _pad(x, pw):
    flat = tuple(v for pair in reversed(pw) for v in pair)
    return torch.nn.functional.pad(x, flat)

kernel_name = 'recurrent_scan__mha_block_cached__glu_gated_swiglu__decode'

def setup_inputs():

    _w = (lambda a: (lambda t: t.to(torch.bfloat16) if t.is_floating_point() else t)(torch.as_tensor(a)))
    def _A_setup():
        B, Sq, D = 1, 1, 640
        H, Sk, Dh = 32, 32768, 192
        return {
            "x": _w((lambda *s: torch.randn(*s, dtype=torch.bfloat16) * 0.2)(B, Sq, D)),
            "k_cache": _w((lambda *s: torch.randn(*s, dtype=torch.bfloat16) * 1.6)(B, H, Sk, Dh)),
            "v_cache": _w((lambda *s: torch.randn(*s, dtype=torch.bfloat16) * 1.6)(B, H, Sk, Dh)),
            "wq": _w((lambda *s: torch.randn(*s, dtype=torch.bfloat16) * 1.6)(D, H * Dh) * (D ** -0.5)),
            "wo": _w((lambda *s: torch.randn(*s, dtype=torch.bfloat16) * 1.6)(H * Dh, D) * ((H * Dh) ** -0.5)),
        }
    _A_in = _A_setup()

    def _B_setup():
        B, S, D, F = 1, 1, 640, 1536
        return {
            "x": _w((lambda *s: torch.randn(*s, dtype=torch.bfloat16) * 0.2)(B, S, D)),
            "w1": _w((lambda *s: torch.randn(*s, dtype=torch.bfloat16) * 0.8)(D, F) * (2.0 / D) ** 0.5),
            "w3": _w((lambda *s: torch.randn(*s, dtype=torch.bfloat16) * 0.8)(D, F) * (2.0 / D) ** 0.5),
            "w2": _w((lambda *s: torch.randn(*s, dtype=torch.bfloat16) * 0.8)(F, D) * (2.0 / F) ** 0.5),
        }
    _B_in = _B_setup()

    return {
        "A_x": _A_in["x"],
        "A_k_cache": _A_in["k_cache"],
        "A_v_cache": _A_in["v_cache"],
        "A_wq": _A_in["wq"],
        "A_wo": _A_in["wo"],
        "B_x": _B_in["x"],
        "B_w1": _B_in["w1"],
        "B_w3": _B_in["w3"],
        "B_w2": _B_in["w2"],
    }

def reference(A_x, A_k_cache, A_v_cache, A_wq, A_wo, B_x, B_w1, B_w3, B_w2):
    def _A_ref(x, k_cache, v_cache, wq, wo):
        B, Sq, D = x.shape
        H, Dh = 32, 192
        q = (lambda x, *d: x.permute(*d))((x @ wq).reshape(B, Sq, H, Dh), 0, 2, 1, 3)
        scores = torch.einsum("bhqd,bhkd->bhqk", q, k_cache) * (Dh ** -0.5)
        p = _softmax(scores, axis=-1)
        o = torch.einsum("bhqk,bhkd->bhqd", p, v_cache)
        return (lambda x, *d: x.permute(*d))(o, 0, 2, 1, 3).reshape(B, Sq, H * Dh) @ wo

    def _B_ref(x, w1, w3, w2):
        gate = torch.einsum("bsd,df->bsf", x, w1)
        up = torch.einsum("bsd,df->bsf", x, w3)
        h = _silu(gate) * up
        out = torch.einsum("bsf,fd->bsd", h, w2)
        return out

    x = A_x
    xn = _layernorm(x, axis=-1)
    s = _A_ref(xn, A_k_cache, A_v_cache, A_wq, A_wo)
    g = _silu(_B_ref(xn, B_w1, B_w3, B_w2))
    return x + s * g
```

```python
import sys

NAME = "recurrent_scan__mha_block_cached__glu_gated_swiglu__decode"
OUT = f"cdna_kernels/{NAME}.s"

NSPLIT = int(sys.argv[1]) if len(sys.argv) > 1 else 16
NT = int(sys.argv[2]) if len(sys.argv) > 2 else 1
MIMIC = int(sys.argv[3]) if len(sys.argv) > 3 else 1
if len(sys.argv) > 4:
    OUT = sys.argv[4]

H, SK, DH, D, F = 32, 32768, 192, 640, 1536
KV_BYTES = H * SK * DH * 2
HEAD_BYTES = SK * DH * 2
WS_BYTES = 1610612736
WS_Y = 0
WS_ML = 0x10000
WS_O = 0x20000
WS_PART = 0x400000
LOG2E = 1.4426950408889634
SCALE = 192 ** -0.5

import struct
def f2u(x):
    return struct.unpack("<I", struct.pack("<f", x))[0]

L = []
def e(s=""):
    L.append(s)

def srd(dst, ptr, nbytes):
    e(f"  s_mov_b32 s{dst}, s{ptr}")
    e(f"  s_and_b32 s{dst+1}, s{ptr+1}, 0xffff")
    e(f"  s_mov_b32 s{dst+2}, {nbytes}")
    e(f"  s_mov_b32 s{dst+3}, 0x00020000")

def rne(dst, src, tmp):
    e(f"  v_cvt_pk_bf16_f32 v{tmp}, v{src}, v{src}")
    e(f"  v_lshlrev_b32 v{dst}, 16, v{tmp}")

def wave_sum(v, t, s0):
    e("  s_nop 1")
    e(f"  v_add_f32_dpp v{v}, v{v}, v{v} quad_perm:[1,0,3,2] row_mask:0xf bank_mask:0xf")
    e("  s_nop 1")
    e(f"  v_add_f32_dpp v{v}, v{v}, v{v} quad_perm:[2,3,0,1] row_mask:0xf bank_mask:0xf")
    e("  s_nop 1")
    e(f"  v_add_f32_dpp v{v}, v{v}, v{v} row_half_mirror row_mask:0xf bank_mask:0xf")
    e("  s_nop 1")
    e(f"  v_add_f32_dpp v{v}, v{v}, v{v} row_mirror row_mask:0xf bank_mask:0xf")
    e("  s_nop 1")
    for k in range(4):
        e(f"  v_readlane_b32 s{s0+k}, v{v}, {16*k}")
    e("  s_nop 3")
    e(f"  v_mov_b32 v{v}, s{s0}")
    e(f"  v_add_f32 v{v}, s{s0+1}, v{v}")
    e(f"  v_add_f32 v{v}, s{s0+2}, v{v}")
    e(f"  v_add_f32 v{v}, s{s0+3}, v{v}")

def header(kname):
    e(f".globl {kname}")
    e(".p2align 8")
    e(f".type {kname},@function")
    e(f"{kname}:")

KD = []
def desc(kname, vgpr, sgpr=64):
    acc = (vgpr + 3) // 4 * 4
    KD.append(f""".p2align 6
.amdhsa_kernel {kname}
  .amdhsa_next_free_vgpr {vgpr}
  .amdhsa_next_free_sgpr {sgpr}
  .amdhsa_accum_offset {acc}
  .amdhsa_group_segment_fixed_size 0
  .amdhsa_kernarg_size 96
  .amdhsa_user_sgpr_count 2
  .amdhsa_user_sgpr_kernarg_segment_ptr 1
  .amdhsa_system_sgpr_workgroup_id_x 1
.end_amdhsa_kernel""")

K1 = "prep_kernel"
K1_WGS = 144
K1_LDS = 4 * 2560 + 32 * 256
def gen_k1():
    header(K1)
    e(f"  s_cmp_ge_u32 s2, {K1_WGS}")
    e("  s_cbranch_scc1 K1_END")
    e("  s_load_dwordx2 s[4:5], s[0:1], 0      ; x")
    e("  s_load_dwordx2 s[6:7], s[0:1], 24     ; wq")
    e("  s_load_dwordx4 s[8:11], s[0:1], 48    ; w1, w3")
    e("  s_load_dwordx2 s[12:13], s[0:1], 88   ; ws")
    e("  s_waitcnt lgkmcnt(0)")
    e("  s_mov_b32 s14, s6")
    e("  s_mov_b32 s15, s7")
    e("  s_mov_b32 s20, 12288")
    e("  s_lshl_b32 s21, s2, 6")
    e("  s_mov_b32 s22, s21")
    e("  s_cmp_lt_u32 s2, 96")
    e("  s_cbranch_scc1 K1_SEL")
    e("  s_mov_b32 s14, s8")
    e("  s_mov_b32 s15, s9")
    e("  s_mov_b32 s20, 3072")
    e("  s_sub_u32 s21, s2, 96")
    e("  s_lshl_b32 s21, s21, 6")
    e("  s_add_u32 s22, s21, 6144")
    e("  s_cmp_lt_u32 s2, 120")
    e("  s_cbranch_scc1 K1_SEL")
    e("  s_mov_b32 s14, s10")
    e("  s_mov_b32 s15, s11")
    e("  s_sub_u32 s21, s2, 120")
    e("  s_lshl_b32 s21, s21, 6")
    e("  s_add_u32 s22, s21, 7680")
    e("K1_SEL:")
    e("  s_mul_i32 s23, s20, 640")
    e("  s_mov_b32 s16, s14")
    e("  s_and_b32 s17, s15, 0xffff")
    e("  s_mov_b32 s18, s23")
    e("  s_mov_b32 s19, 0x00020000   ; SRD W = s[16:19]")
    srd(24, 4, 1280)
    srd(28, 12, WS_BYTES)
    e("  v_and_b32 v1, 63, v0          ; lane")
    e("  v_lshrrev_b32 v2, 6, v0       ; wave")
    e("  v_lshrrev_b32 v3, 3, v1       ; rg")
    e("  v_and_b32 v4, 7, v1           ; j")
    e("  v_lshl_add_u32 v5, v2, 3, v3")
    e("  v_mul_lo_u32 v6, v5, s20      ; row0*ld")
    e("  v_lshlrev_b32 v7, 4, v4       ; j*16")
    e("  s_lshl_b32 s3, s21, 1         ; col0*2")
    e("  v_add3_u32 v6, v6, v7, s3     ; voff")
    e("  s_lshl_b32 s32, s20, 5        ; 32*ld")
    e("  s_mov_b32 s33, 0")
    WB = 16
    for st in range(20):
        e(f"  buffer_load_dwordx4 v[{WB+4*st}:{WB+4*st+3}], v6, s[16:19], s33 offen")
        if st < 19:
            e("  s_add_u32 s33, s33, s32")
    e("  v_lshlrev_b32 v8, 2, v1       ; lane*4")
    for i in range(5):
        e(f"  buffer_load_dword v{100+i}, v8, s[24:27], 0 offen offset:{256*i}")
    e("  s_waitcnt vmcnt(0)")
    e("  s_mov_b32 s34, 0xffff0000")
    for i in range(5):
        e(f"  v_lshlrev_b32 v{110+2*i}, 16, v{100+i}")
        e(f"  v_and_b32 v{111+2*i}, s34, v{100+i}")
    e("  v_add_f32 v9, v110, v111")
    for i in range(2, 10):
        e(f"  v_add_f32 v9, v9, v{110+i}")
    wave_sum(9, 10, 36)
    e(f"  v_mul_f32 v9, {f2u(1.0/640):#x}, v9    ; mean (f32)")
    e("  v_sub_f32 v10, v110, v9")
    e("  v_mul_f32 v11, v10, v10")
    for i in range(1, 10):
        e(f"  v_sub_f32 v10, v{110+i}, v9")
        e("  v_fmac_f32 v11, v10, v10")
    wave_sum(11, 10, 36)
    e(f"  v_mul_f32 v11, {f2u(1.0/640):#x}, v11  ; var (f32)")
    rne(9, 9, 12)
    rne(11, 11, 12)
    e(f"  v_add_f32 v11, {f2u(1e-5):#x}, v11")
    rne(11, 11, 12)
    e("  v_sqrt_f32 v11, v11")
    e("  s_nop 0")
    rne(11, 11, 12)
    e("  v_rcp_f32 v11, v11")
    e("  s_nop 0")
    for i in range(10):
        e(f"  v_sub_f32 v{110+i}, v{110+i}, v9")
        rne(110+i, 110+i, 12)
        e(f"  v_mul_f32 v{110+i}, v{110+i}, v11")
        rne(110+i, 110+i, 12)
    e("  v_mul_u32_u24 v12, 2560, v2")
    e("  v_lshl_add_u32 v13, v1, 3, v12")
    for i in range(5):
        e(f"  ds_write_b64 v13, v[{110+2*i}:{111+2*i}] offset:{512*i}")
    e("  s_waitcnt lgkmcnt(0)")
    e("  v_lshl_add_u32 v13, v5, 2, v12")
    XB = 120
    for st in range(20):
        e(f"  ds_read_b32 v{XB+st}, v13 offset:{128*st}")
    for c in range(8):
        e(f"  v_mov_b32 v{100+c}, 0")
    e("  s_waitcnt vmcnt(0) lgkmcnt(0)")
    for st in range(20):
        for c in range(4):
            w = WB + 4*st + c
            e(f"  v_lshlrev_b32 v8, 16, v{w}")
            e(f"  v_and_b32 v9, s34, v{w}")
            e(f"  v_fmac_f32 v{100+2*c}, v8, v{XB+st}")
            e(f"  v_fmac_f32 v{101+2*c}, v9, v{XB+st}")
    e("  v_lshlrev_b32 v8, 8, v5        ; rowgroup*256")
    e("  v_lshl_add_u32 v8, v4, 5, v8   ; + j*32")
    e("  ds_write_b128 v8, v[100:103] offset:10240")
    e("  ds_write_b128 v8, v[104:107] offset:10256")
    e("  s_waitcnt lgkmcnt(0)")
    e("  s_barrier")
    e("  v_cmp_gt_u32 vcc, 64, v0")
    e("  s_and_saveexec_b64 s[36:37], vcc")
    e("  s_cbranch_execz K1_END")
    e("  v_lshlrev_b32 v8, 2, v0")
    for g in range(32):
        e(f"  ds_read_b32 v{16+g}, v8 offset:{10240+256*g}")
    e("  s_waitcnt lgkmcnt(0)")
    for g in range(1, 32):
        e(f"  v_add_f32 v16, v16, v{16+g}")
    e("  v_cvt_pk_bf16_f32 v16, v16, v16")
    e("  s_lshl_b32 s22, s22, 1")
    e("  v_lshl_add_u32 v8, v0, 1, s22")
    e(f"  buffer_store_short v16, v8, s[28:31], 0 offen offset:{WS_Y}")
    e("K1_END:")
    e("  s_endpgm")
    desc(K1, 144)

K2 = "attn_kernel"
K2_WGS = H * NSPLIT
CH = SK // NSPLIT
CW = CH // 4
NTILE = CW // 16
assert NTILE % 2 == 0 and NTILE >= 2
K2_LDS = 256 + 32 * 768
def gen_k2():
    nt = " nt" if NT else ""
    header(K2)
    e(f"  s_cmp_ge_u32 s2, {K2_WGS}")
    e("  s_cbranch_scc1 K2_END")
    e("  s_load_dwordx4 s[24:27], s[0:1], 8    ; k, v")
    e("  s_load_dwordx2 s[28:29], s[0:1], 88   ; ws")
    e("  v_and_b32 v1, 63, v0")
    e("  v_lshrrev_b32 v2, 6, v0")
    e("  s_nop 0")
    e("  v_readfirstlane_b32 s20, v2")
    e("  s_waitcnt lgkmcnt(0)")
    srd(4, 24, KV_BYTES)
    srd(8, 26, KV_BYTES)
    srd(12, 28, WS_BYTES)
    sh = NSPLIT.bit_length() - 1
    e(f"  s_lshr_b32 s18, s2, {sh}      ; head")
    e(f"  s_and_b32 s19, s2, {NSPLIT-1} ; split")
    e(f"  s_mul_i32 s16, s18, {HEAD_BYTES}")
    e(f"  s_mul_i32 s17, s19, {CH*384}")
    e("  s_add_u32 s16, s16, s17")
    e(f"  s_mul_i32 s17, s20, {CW*384}")
    e("  s_add_u32 s16, s16, s17")
    e(f"  s_mov_b32 s21, {f2u(LOG2E):#x}")
    e(f"  s_mov_b32 s22, {f2u(SCALE):#x}")
    e(f"  s_mov_b32 s23, {f2u(-LOG2E):#x}")
    e("  s_mov_b32 s30, 0xffff0000")
    e("  v_lshrrev_b32 v3, 3, v1      ; r")
    e("  v_and_b32 v4, 7, v1          ; j")
    e("  v_mul_u32_u24 v1, 384, v3")
    e("  v_lshl_add_u32 v1, v4, 4, v1 ; voff = r*384 + j*16")
    e("  s_mul_i32 s17, s18, 384")
    e("  v_lshl_add_u32 v5, v4, 4, s17")
    for i in range(3):
        e(f"  buffer_load_dwordx4 v[{2+4*i+4}:{2+4*i+7}], v5, s[12:15], 0 offen offset:{WS_Y + 128*i}")
    QB = 6
    M_, L_ = 18, 19
    ACC = 20
    SA_K, SA_V, SB_K, SB_V = 44, 68, 92, 116
    TMP = 140
    e(f"  v_mov_b32 v{M_}, 0xff800000")
    e(f"  v_mov_b32 v{L_}, 0")
    for a in range(24):
        e(f"  v_mov_b32 v{ACC+a}, 0")

    def issue(KB, VB):
        for t in range(2):
            for i in range(3):
                e(f"  buffer_load_dwordx4 v[{KB+12*t+4*i}:{KB+12*t+4*i+3}], v1, s[4:7], s16 offen offset:{3072*t+128*i}{nt}")
        for t in range(2):
            for i in range(3):
                e(f"  buffer_load_dwordx4 v[{VB+12*t+4*i}:{VB+12*t+4*i+3}], v1, s[8:11], s16 offen offset:{3072*t+128*i}{nt}")
        e("  s_add_u32 s16, s16, 6144")

    def process(KB, VB, wk, wv):
        T = TMP
        e(f"  s_waitcnt vmcnt({wk})")
        for t in range(2):
            for i in range(3):
                d = T + 3*t + i
                k0 = KB + 12*t + 4*i
                e(f"  v_dot2_f32_bf16 v{d}, v{k0}, v{QB+4*i}, 0")
                for c in range(1, 4):
                    e(f"  v_dot2c_f32_bf16 v{d}, v{k0+c}, v{QB+4*i+c}")
        s0, s1 = T, T + 3
        e(f"  v_add_f32 v{s0}, v{s0}, v{s0+1}")
        e(f"  v_add_f32 v{s1}, v{s1}, v{s1+1}")
        e(f"  v_add_f32 v{s0}, v{s0}, v{s0+2}")
        e(f"  v_add_f32 v{s1}, v{s1}, v{s1+2}")
        for mode in ("quad_perm:[1,0,3,2]", "quad_perm:[2,3,0,1]", "row_half_mirror"):
            e("  s_nop 0")
            e(f"  v_add_f32_dpp v{s0}, v{s0}, v{s0} {mode} row_mask:0xf bank_mask:0xf")
            e(f"  v_add_f32_dpp v{s1}, v{s1}, v{s1} {mode} row_mask:0xf bank_mask:0xf")
        if MIMIC:
            e(f"  v_cvt_pk_bf16_f32 v{T+1}, v{s0}, v{s1}")
            e(f"  v_lshlrev_b32 v{s0}, 16, v{T+1}")
            e(f"  v_and_b32 v{s1}, s30, v{T+1}")
            e(f"  v_mul_f32 v{s0}, s22, v{s0}")
            e(f"  v_mul_f32 v{s1}, s22, v{s1}")
            e(f"  v_cvt_pk_bf16_f32 v{T+1}, v{s0}, v{s1}")
            e(f"  v_lshlrev_b32 v{s0}, 16, v{T+1}")
            e(f"  v_and_b32 v{s1}, s30, v{T+1}")
        else:
            e(f"  v_mul_f32 v{s0}, s22, v{s0}")
            e(f"  v_mul_f32 v{s1}, s22, v{s1}")
        mn, nm, ea = T + 6, T + 7, T + 8
        e(f"  v_max3_f32 v{mn}, v{M_}, v{s0}, v{s1}")
        e(f"  v_mul_f32 v{nm}, s23, v{mn}")
        e(f"  v_fma_f32 v{ea}, v{M_}, s21, v{nm}")
        e(f"  v_fma_f32 v{s0}, v{s0}, s21, v{nm}")
        e(f"  v_fma_f32 v{s1}, v{s1}, s21, v{nm}")
        e(f"  v_exp_f32 v{ea}, v{ea}")
        e(f"  v_exp_f32 v{s0}, v{s0}")
        e(f"  v_exp_f32 v{s1}, v{s1}")
        e(f"  v_mov_b32 v{M_}, v{mn}")
        e(f"  v_fma_f32 v{L_}, v{L_}, v{ea}, v{s0}")
        e(f"  v_add_f32 v{L_}, v{L_}, v{s1}")
        e(f"  s_waitcnt vmcnt({wv})")
        u = T + 10
        for i in range(3):
            for c in range(4):
                a = ACC + 8*i + 2*c
                v0_, v1_ = VB + 4*i + c, VB + 12 + 4*i + c
                e(f"  v_lshlrev_b32 v{u}, 16, v{v0_}")
                e(f"  v_and_b32 v{u+1}, s30, v{v0_}")
                e(f"  v_lshlrev_b32 v{u+2}, 16, v{v1_}")
                e(f"  v_and_b32 v{u+3}, s30, v{v1_}")
                e(f"  v_mul_f32 v{a}, v{a}, v{ea}")
                e(f"  v_mul_f32 v{a+1}, v{a+1}, v{ea}")
                e(f"  v_fmac_f32 v{a}, v{s0}, v{u}")
                e(f"  v_fmac_f32 v{a+1}, v{s0}, v{u+1}")
                e(f"  v_fmac_f32 v{a}, v{s1}, v{u+2}")
                e(f"  v_fmac_f32 v{a+1}, v{s1}, v{u+3}")

    issue(SA_K, SA_V)
    nloop = NTILE // 2 - 1
    if nloop > 0:
        e(f"  s_mov_b32 s17, {nloop}")
        e("K2_LOOP:")
        issue(SB_K, SB_V)
        process(SA_K, SA_V, 18, 12)
        issue(SA_K, SA_V)
        process(SB_K, SB_V, 18, 12)
        e("  s_sub_u32 s17, s17, 1")
        e("  s_cmp_lg_u32 s17, 0")
        e("  s_cbranch_scc1 K2_LOOP")
    issue(SB_K, SB_V)
    process(SA_K, SA_V, 18, 12)
    process(SB_K, SB_V, 6, 0)

    T = TMP
    e("  v_lshrrev_b32 v2, 3, v0")
    e(f"  v_lshlrev_b32 v{T}, 2, v2")
    e(f"  ds_write_b32 v{T}, v{M_}")
    e("  s_waitcnt lgkmcnt(0)")
    e("  s_barrier")
    e(f"  v_mov_b32 v{T+1}, 0")
    KB = SA_K
    for k in range(8):
        e(f"  ds_read_b128 v[{KB+4*k}:{KB+4*k+3}], v{T+1} offset:{16*k}")
    e("  s_waitcnt lgkmcnt(0)")
    e(f"  v_max3_f32 v{T+2}, v{KB}, v{KB+1}, v{KB+2}")
    for k in range(3, 31, 2):
        e(f"  v_max3_f32 v{T+2}, v{T+2}, v{KB+k}, v{KB+k+1}")
    e(f"  v_max_f32 v{T+2}, v{T+2}, v{KB+31}   ; M")
    e(f"  v_sub_f32 v{T+3}, v{M_}, v{T+2}")
    e(f"  v_mul_f32 v{T+3}, s21, v{T+3}")
    e(f"  v_exp_f32 v{T+3}, v{T+3}")
    e("  s_nop 0")
    for a in range(24):
        e(f"  v_mul_f32 v{ACC+a}, v{ACC+a}, v{T+3}")
    e(f"  v_mul_f32 v{L_}, v{L_}, v{T+3}")
    e(f"  ds_write_b32 v{T}, v{L_} offset:128")
    e(f"  v_mul_u32_u24 v{T+4}, 768, v2")
    e(f"  v_lshl_add_u32 v{T+4}, v4, 5, v{T+4}")
    for i in range(3):
        e(f"  ds_write_b128 v{T+4}, v[{ACC+8*i}:{ACC+8*i+3}] offset:{256+256*i}")
        e(f"  ds_write_b128 v{T+4}, v[{ACC+8*i+4}:{ACC+8*i+7}] offset:{256+256*i+16}")
    e("  s_waitcnt lgkmcnt(0)")
    e("  s_barrier")
    for k in range(8):
        e(f"  ds_read_b128 v[{KB+4*k}:{KB+4*k+3}], v{T+1} offset:{128+16*k}")
    e(f"  v_lshlrev_b32 v{T+5}, 2, v0")
    e("  v_cmp_gt_u32 vcc, 192, v0")
    e("  s_and_saveexec_b64 s[32:33], vcc")
    e("  s_cbranch_execz K2_SKIPO")
    VB = SB_K
    for g in range(32):
        e(f"  ds_read_b32 v{VB+g}, v{T+5} offset:{256+768*g}")
    e("  s_waitcnt lgkmcnt(0)")
    for g in range(1, 32):
        e(f"  v_add_f32 v{VB}, v{VB}, v{VB+g}")
    e(f"  s_mul_i32 s17, s2, 768")
    e(f"  v_add_u32 v{T+5}, s17, v{T+5}")
    e(f"  buffer_store_dword v{VB}, v{T+5}, s[12:15], 0 offen offset:0  ; placeholder")
    L.pop()
    e(f"  s_add_u32 s17, s17, {WS_O}")
    e(f"  v_lshlrev_b32 v{T+5}, 2, v0")
    e(f"  buffer_store_dword v{VB}, v{T+5}, s[12:15], s17 offen")
    e("K2_SKIPO:")
    e("  s_mov_b64 exec, s[32:33]")
    e("  s_waitcnt lgkmcnt(0)")
    for k in range(1, 32):
        e(f"  v_add_f32 v{KB}, v{KB}, v{KB+k}")
    e(f"  v_mul_f32 v{T+2}, s21, v{T+2}")
    e(f"  v_mov_b32 v{T+3}, v{KB}")
    e("  v_cmp_eq_u32 vcc, 0, v0")
    e("  s_and_saveexec_b64 s[32:33], vcc")
    e("  s_cbranch_execz K2_END")
    e(f"  s_lshl_b32 s17, s2, 3")
    e(f"  s_add_u32 s17, s17, {WS_ML}")
    e(f"  v_mov_b32 v{T+5}, 0")
    e(f"  buffer_store_dwordx2 v[{T+2}:{T+3}], v{T+5}, s[12:15], s17 offen")
    e("K2_END:")
    e("  s_endpgm")
    desc(K2, 156)

K3 = "proj_kernel"
K3_WGS = 160
K3_LDS = 256 + 3 * 640 * 4
def gen_k3():
    header(K3)
    e(f"  s_cmp_ge_u32 s2, {K3_WGS}")
    e("  s_cbranch_scc1 K3_END")
    e("  s_load_dwordx2 s[4:5], s[0:1], 32     ; wo")
    e("  s_load_dwordx2 s[6:7], s[0:1], 64     ; w2")
    e("  s_load_dwordx2 s[8:9], s[0:1], 88     ; ws")
    e("  s_waitcnt lgkmcnt(0)")
    srd(12, 8, WS_BYTES)
    e("  s_mov_b32 s16, s4")
    e("  s_mov_b32 s17, s5")
    e(f"  s_mov_b32 s18, {6144*1280}")
    e("  s_mul_i32 s20, s2, 48       ; row0")
    e("  s_cmp_lt_u32 s2, 128")
    e("  s_cbranch_scc1 K3_SEL")
    e("  s_mov_b32 s16, s6")
    e("  s_mov_b32 s17, s7")
    e(f"  s_mov_b32 s18, {1536*1280}")
    e("  s_sub_u32 s20, s2, 128")
    e("  s_mul_i32 s20, s20, 48")
    e("K3_SEL:")
    e("  s_and_b32 s17, s17, 0xffff")
    e("  s_mov_b32 s19, 0x00020000")
    e("  s_mov_b32 s30, 0xffff0000")
    e("  v_lshlrev_b32 v1, 4, v0")
    e("  s_mul_i32 s21, s20, 1280")
    e("  v_cmp_gt_u32 vcc, 240, v0")
    e("  s_and_saveexec_b64 s[32:33], vcc")
    e("  s_cbranch_execz K3_NOLOAD")
    WB = 16
    for st in range(16):
        e(f"  buffer_load_dwordx4 v[{WB+4*st}:{WB+4*st+3}], v1, s[16:19], s21 offen")
        if st < 15:
            e("  s_add_u32 s21, s21, 3840")
    e("K3_NOLOAD:")
    e("  s_mov_b64 exec, s[32:33]")
    e("  v_cmp_gt_u32 vcc, 48, v0")
    e("  s_and_saveexec_b64 s[32:33], vcc")
    e("  s_cbranch_execz K3_VECDONE")
    e("  s_cmp_lt_u32 s2, 128")
    e("  s_cbranch_scc0 K3_FFN")
    e("  s_lshr_b32 s22, s2, 2        ; head")
    e("  s_and_b32 s23, s2, 3")
    e("  s_mul_i32 s23, s23, 48       ; d0")
    e(f"  s_mul_i32 s24, s22, {NSPLIT*8}")
    e(f"  s_add_u32 s24, s24, {WS_ML}")
    e("  v_mov_b32 v2, 0")
    MB = 80
    for s in range(NSPLIT):
        e(f"  buffer_load_dwordx2 v[{MB+2*s}:{MB+2*s+1}], v2, s[12:15], s24 offen offset:{8*s}")
    e(f"  s_mul_i32 s25, s22, {NSPLIT*768}")
    e("  s_lshl_b32 s26, s23, 2")
    e("  s_add_u32 s25, s25, s26")
    e(f"  s_add_u32 s25, s25, {WS_O}")
    e("  v_lshlrev_b32 v3, 2, v0")
    OB = MB + 2 * NSPLIT
    for s in range(NSPLIT):
        e(f"  buffer_load_dword v{OB+s}, v3, s[12:15], s25 offen")
        e("  s_add_u32 s25, s25, 768")
    e(f"  s_waitcnt vmcnt({NSPLIT})")
    e(f"  v_mov_b32 v4, v{MB}")
    for s in range(1, NSPLIT):
        e(f"  v_max_f32 v4, v4, v{MB+2*s}")
    e("  v_mov_b32 v5, 0     ; L")
    e("  v_mov_b32 v6, 0     ; O")
    for s in range(NSPLIT):
        e(f"  v_sub_f32 v7, v{MB+2*s}, v4")
        e("  v_exp_f32 v7, v7")
        e("  s_nop 0")
        e(f"  v_fmac_f32 v5, v7, v{MB+2*s+1}")
        if s == 0:
            e("  s_waitcnt vmcnt(0)")
        e(f"  v_fmac_f32 v6, v7, v{OB+s}")
    e("  v_rcp_f32 v5, v5")
    e("  s_nop 0")
    e("  v_mul_f32 v6, v6, v5")
    rne(6, 6, 7)
    e("  s_branch K3_VECST")
    e("K3_FFN:")
    e("  v_lshlrev_b32 v3, 1, v0")
    e("  s_lshl_b32 s24, s20, 1")
    e(f"  s_add_u32 s25, s24, {WS_Y + 6144*2}")
    e(f"  s_add_u32 s26, s24, {WS_Y + 7680*2}")
    e("  buffer_load_ushort v4, v3, s[12:15], s25 offen")
    e("  buffer_load_ushort v5, v3, s[12:15], s26 offen")
    e("  s_waitcnt vmcnt(0)")
    e("  v_lshlrev_b32 v4, 16, v4   ; gate")
    e("  v_lshlrev_b32 v5, 16, v5   ; up")
    e(f"  v_mul_f32 v6, {f2u(-LOG2E):#x}, v4")
    e("  v_exp_f32 v6, v6")
    e("  s_nop 0")
    e("  v_add_f32 v6, 1.0, v6")
    e("  v_rcp_f32 v6, v6")
    e("  s_nop 0")
    e("  v_mul_f32 v6, v4, v6       ; silu")
    rne(6, 6, 7)
    e("  v_mul_f32 v6, v6, v5")
    rne(6, 6, 7)
    e("K3_VECST:")
    e("  v_lshlrev_b32 v3, 2, v0")
    e("  ds_write_b32 v3, v6")
    e("K3_VECDONE:")
    e("  s_mov_b64 exec, s[32:33]")
    e("  s_waitcnt lgkmcnt(0)")
    e("  s_barrier")
    e("  v_cmp_gt_u32 vcc, 240, v0")
    e("  s_and_saveexec_b64 s[32:33], vcc")
    e("  s_cbranch_execz K3_GDONE")
    e("  v_cmp_le_u32 vcc, 80, v0")
    e("  s_nop 1")
    e("  v_cndmask_b32 v2, 0, 4, vcc")
    e("  v_cmp_le_u32 vcc, 160, v0")
    e("  s_nop 1")
    e("  v_cndmask_b32 v2, v2, 8, vcc   ; rb*4")
    XB = 80
    for st in range(16):
        e(f"  ds_read_b32 v{XB+st}, v2 offset:{12*st}")
    for c in range(8):
        e(f"  v_mov_b32 v{4+c}, 0")
    e("  s_waitcnt vmcnt(0) lgkmcnt(0)")
    for st in range(16):
        for c in range(4):
            w = WB + 4*st + c
            e(f"  v_lshlrev_b32 v12, 16, v{w}")
            e(f"  v_and_b32 v13, s30, v{w}")
            e(f"  v_fmac_f32 v{4+2*c}, v12, v{XB+st}")
            e(f"  v_fmac_f32 v{5+2*c}, v13, v{XB+st}")
    e("  v_lshlrev_b32 v2, 5, v0")
    e("  ds_write_b128 v2, v[4:7] offset:256")
    e("  ds_write_b128 v2, v[8:11] offset:272")
    e("K3_GDONE:")
    e("  s_mov_b64 exec, s[32:33]")
    e("  s_waitcnt lgkmcnt(0)")
    e("  s_barrier")
    e("  v_lshlrev_b32 v2, 2, v0")
    for k in range(3):
        for rb in range(3):
            e(f"  ds_read_b32 v{16+3*k+rb}, v2 offset:{256 + rb*2560 + k*1024}")
    e("  s_waitcnt lgkmcnt(0)")
    for k in range(3):
        e(f"  v_add_f32 v{16+3*k}, v{16+3*k}, v{17+3*k}")
        e(f"  v_add_f32 v{16+3*k}, v{16+3*k}, v{18+3*k}")
    e("  s_mul_i32 s24, s2, 2560")
    e(f"  s_add_u32 s24, s24, {WS_PART}")
    e("  buffer_store_dword v16, v2, s[12:15], s24 offen")
    e("  buffer_store_dword v19, v2, s[12:15], s24 offen offset:1024")
    e("  v_cmp_gt_u32 vcc, 128, v0")
    e("  s_and_saveexec_b64 s[32:33], vcc")
    e("  s_cbranch_execz K3_END")
    e("  buffer_store_dword v22, v2, s[12:15], s24 offen offset:2048")
    e("K3_END:")
    e("  s_endpgm")
    desc(K3, 128)

K4 = "final_kernel"
K4_WGS = 10
K4_LDS = 2 * 4 * 64 * 4
def gen_k4():
    header(K4)
    e(f"  s_cmp_ge_u32 s2, {K4_WGS}")
    e("  s_cbranch_scc1 K4_END")
    e("  s_load_dwordx2 s[4:5], s[0:1], 0      ; x")
    e("  s_load_dwordx2 s[6:7], s[0:1], 72     ; out")
    e("  s_load_dwordx2 s[8:9], s[0:1], 88     ; ws")
    e("  v_and_b32 v1, 63, v0")
    e("  v_lshrrev_b32 v2, 6, v0")
    e("  s_nop 0")
    e("  v_readfirstlane_b32 s20, v2")
    e("  s_waitcnt lgkmcnt(0)")
    srd(12, 8, WS_BYTES)
    srd(16, 4, 1280)
    srd(24, 6, 1280)
    e("  s_lshl_b32 s21, s2, 8")
    e("  v_lshl_add_u32 v3, v1, 2, s21")
    e("  s_mul_i32 s22, s20, 32*2560")
    e(f"  s_add_u32 s22, s22, {WS_PART}")
    for k in range(32):
        e(f"  buffer_load_dword v{16+k}, v3, s[12:15], s22 offen")
        e("  s_add_u32 s22, s22, 2560")
    e("  s_mul_i32 s22, s20, 8*2560")
    e(f"  s_add_u32 s22, s22, {WS_PART + 128*2560}")
    for k in range(8):
        e(f"  buffer_load_dword v{48+k}, v3, s[12:15], s22 offen")
        e("  s_add_u32 s22, s22, 2560")
    e("  s_waitcnt vmcnt(8)")
    for k in range(1, 32):
        e(f"  v_add_f32 v16, v16, v{16+k}")
    e("  s_waitcnt vmcnt(0)")
    for k in range(1, 8):
        e(f"  v_add_f32 v48, v48, v{48+k}")
    e("  v_lshlrev_b32 v4, 2, v0    ; (wave*64+lane)*4")
    e("  ds_write_b32 v4, v16")
    e("  ds_write_b32 v4, v48 offset:1024")
    e("  s_waitcnt lgkmcnt(0)")
    e("  s_barrier")
    e("  v_cmp_gt_u32 vcc, 64, v0")
    e("  s_and_saveexec_b64 s[32:33], vcc")
    e("  s_cbranch_execz K4_END")
    for w in range(4):
        e(f"  ds_read_b32 v{16+w}, v4 offset:{256*w}")
        e(f"  ds_read_b32 v{20+w}, v4 offset:{1024+256*w}")
    e("  s_lshl_b32 s21, s2, 7")
    e("  v_lshl_add_u32 v5, v1, 1, s21")
    e("  buffer_load_ushort v6, v5, s[16:19], 0 offen")
    e("  s_waitcnt lgkmcnt(0)")
    e("  v_add_f32 v16, v16, v17")
    e("  v_add_f32 v18, v18, v19")
    e("  v_add_f32 v16, v16, v18    ; s")
    e("  v_add_f32 v20, v20, v21")
    e("  v_add_f32 v22, v22, v23")
    e("  v_add_f32 v20, v20, v22    ; f")
    rne(16, 16, 7)
    rne(20, 20, 7)
    e(f"  v_mul_f32 v8, {f2u(-LOG2E):#x}, v20")
    e("  v_exp_f32 v8, v8")
    e("  s_nop 0")
    e("  v_add_f32 v8, 1.0, v8")
    e("  v_rcp_f32 v8, v8")
    e("  s_nop 0")
    e("  v_mul_f32 v8, v20, v8")
    rne(8, 8, 7)
    e("  v_mul_f32 v8, v16, v8")
    rne(8, 8, 7)
    e("  s_waitcnt vmcnt(0)")
    e("  v_lshlrev_b32 v6, 16, v6")
    e("  v_add_f32 v8, v6, v8")
    e("  v_cvt_pk_bf16_f32 v8, v8, v8")
    e("  buffer_store_short v8, v5, s[24:27], 0 offen")
    e("K4_END:")
    e("  s_endpgm")
    desc(K4, 64)

top = []
top.append(f"; @launch kernel={K1} grid=({K1_WGS},1,1) block=(256,1,1) lds={K1_LDS}")
top.append(f"; @launch kernel={K2} grid=({K2_WGS},1,1) block=(256,1,1) lds={K2_LDS}")
top.append(f"; @launch kernel={K3} grid=({K3_WGS},1,1) block=(256,1,1) lds={K3_LDS}")
top.append(f"; @launch kernel={K4} grid=({K4_WGS},1,1) block=(256,1,1) lds={K4_LDS}")
top.append('.amdgcn_target "amdgcn-amd-amdhsa--gfx950"')
top.append(".text")
gen_k1(); gen_k2(); gen_k3(); gen_k4()
src = "\n".join(top) + "\n" + "\n".join(L) + "\n" + '.section .rodata,"a"\n' + "\n".join(KD) + "\n"
open(OUT, "w").write(src)
print("wrote", OUT, len(src), "bytes")
```

```python
import sys

NAME = "recurrent_scan__mha_block_cached__glu_gated_swiglu__decode"
OUT = f"cdna_kernels/{NAME}.s"

NSPLIT = int(sys.argv[1]) if len(sys.argv) > 1 else 16
NT = int(sys.argv[2]) if len(sys.argv) > 2 else 1
MIMIC = int(sys.argv[3]) if len(sys.argv) > 3 else 1
if len(sys.argv) > 4:
    OUT = sys.argv[4]

H, SK, DH, D, F = 32, 32768, 192, 640, 1536
KV_BYTES = H * SK * DH * 2
HEAD_BYTES = SK * DH * 2
WS_BYTES = 1610612736
WS_Y = 0
WS_ML = 0x10000
WS_O = 0x20000
WS_PART = 0x400000
LOG2E = 1.4426950408889634
SCALE = 192 ** -0.5

import struct
def f2u(x):
    return struct.unpack("<I", struct.pack("<f", x))[0]

L = []
def e(s=""):
    L.append(s)

def srd(dst, ptr, nbytes):
    e(f"  s_mov_b32 s{dst}, s{ptr}")
    e(f"  s_and_b32 s{dst+1}, s{ptr+1}, 0xffff")
    e(f"  s_mov_b32 s{dst+2}, {nbytes}")
    e(f"  s_mov_b32 s{dst+3}, 0x00020000")

def rne(dst, src, tmp):
    e(f"  v_cvt_pk_bf16_f32 v{tmp}, v{src}, v{src}")
    e(f"  v_lshlrev_b32 v{dst}, 16, v{tmp}")

def wave_sum(v, t, s0):
    e("  s_nop 1")
    e(f"  v_add_f32_dpp v{v}, v{v}, v{v} quad_perm:[1,0,3,2] row_mask:0xf bank_mask:0xf")
    e("  s_nop 1")
    e(f"  v_add_f32_dpp v{v}, v{v}, v{v} quad_perm:[2,3,0,1] row_mask:0xf bank_mask:0xf")
    e("  s_nop 1")
    e(f"  v_add_f32_dpp v{v}, v{v}, v{v} row_half_mirror row_mask:0xf bank_mask:0xf")
    e("  s_nop 1")
    e(f"  v_add_f32_dpp v{v}, v{v}, v{v} row_mirror row_mask:0xf bank_mask:0xf")
    e("  s_nop 1")
    for k in range(4):
        e(f"  v_readlane_b32 s{s0+k}, v{v}, {16*k}")
    e("  s_nop 3")
    e(f"  v_mov_b32 v{v}, s{s0}")
    e(f"  v_add_f32 v{v}, s{s0+1}, v{v}")
    e(f"  v_add_f32 v{v}, s{s0+2}, v{v}")
    e(f"  v_add_f32 v{v}, s{s0+3}, v{v}")

def header(kname):
    e(f".globl {kname}")
    e(".p2align 8")
    e(f".type {kname},@function")
    e(f"{kname}:")

KD = []
def desc(kname, vgpr, sgpr=64):
    acc = (vgpr + 3) // 4 * 4
    KD.append(f""".p2align 6
.amdhsa_kernel {kname}
  .amdhsa_next_free_vgpr {vgpr}
  .amdhsa_next_free_sgpr {sgpr}
  .amdhsa_accum_offset {acc}
  .amdhsa_group_segment_fixed_size 0
  .amdhsa_kernarg_size 96
  .amdhsa_user_sgpr_count 2
  .amdhsa_user_sgpr_kernarg_segment_ptr 1
  .amdhsa_system_sgpr_workgroup_id_x 1
.end_amdhsa_kernel""")

K1 = "prep_kernel"
K1_WGS = 144
K1_LDS = 4 * 2560 + 32 * 256
def gen_k1(standalone=True):
    if standalone:
        header(K1)
        e(f"  s_cmp_ge_u32 s2, {K1_WGS}")
        e("  s_cbranch_scc1 K1_END")
    e("  s_load_dwordx2 s[4:5], s[0:1], 0      ; x")
    e("  s_load_dwordx2 s[6:7], s[0:1], 24     ; wq")
    e("  s_load_dwordx4 s[8:11], s[0:1], 48    ; w1, w3")
    e("  s_load_dwordx2 s[12:13], s[0:1], 88   ; ws")
    e("  s_waitcnt lgkmcnt(0)")
    e("  s_mov_b32 s14, s6")
    e("  s_mov_b32 s15, s7")
    e("  s_mov_b32 s20, 12288")
    e("  s_lshl_b32 s21, s2, 6")
    e("  s_mov_b32 s22, s21")
    e("  s_cmp_lt_u32 s2, 96")
    e("  s_cbranch_scc1 K1_SEL")
    e("  s_mov_b32 s14, s8")
    e("  s_mov_b32 s15, s9")
    e("  s_mov_b32 s20, 3072")
    e("  s_sub_u32 s21, s2, 96")
    e("  s_lshl_b32 s21, s21, 6")
    e("  s_add_u32 s22, s21, 6144")
    e("  s_cmp_lt_u32 s2, 120")
    e("  s_cbranch_scc1 K1_SEL")
    e("  s_mov_b32 s14, s10")
    e("  s_mov_b32 s15, s11")
    e("  s_sub_u32 s21, s2, 120")
    e("  s_lshl_b32 s21, s21, 6")
    e("  s_add_u32 s22, s21, 7680")
    e("K1_SEL:")
    e("  s_mul_i32 s23, s20, 640")
    e("  s_mov_b32 s16, s14")
    e("  s_and_b32 s17, s15, 0xffff")
    e("  s_mov_b32 s18, s23")
    e("  s_mov_b32 s19, 0x00020000   ; SRD W = s[16:19]")
    srd(24, 4, 1280)
    srd(28, 12, WS_BYTES)
    e("  v_and_b32 v1, 63, v0          ; lane")
    e("  v_lshrrev_b32 v2, 6, v0       ; wave")
    e("  v_lshrrev_b32 v3, 3, v1       ; rg")
    e("  v_and_b32 v4, 7, v1           ; j")
    e("  v_lshl_add_u32 v5, v2, 3, v3")
    e("  v_mul_lo_u32 v6, v5, s20      ; row0*ld")
    e("  v_lshlrev_b32 v7, 4, v4       ; j*16")
    e("  s_lshl_b32 s3, s21, 1         ; col0*2")
    e("  v_add3_u32 v6, v6, v7, s3     ; voff")
    e("  s_lshl_b32 s32, s20, 5        ; 32*ld")
    e("  s_mov_b32 s33, 0")
    WB = 16
    for st in range(20):
        e(f"  buffer_load_dwordx4 v[{WB+4*st}:{WB+4*st+3}], v6, s[16:19], s33 offen")
        if st < 19:
            e("  s_add_u32 s33, s33, s32")
    e("  v_lshlrev_b32 v8, 2, v1       ; lane*4")
    for i in range(5):
        e(f"  buffer_load_dword v{100+i}, v8, s[24:27], 0 offen offset:{256*i}")
    e("  s_waitcnt vmcnt(0)")
    e("  s_mov_b32 s34, 0xffff0000")
    for i in range(5):
        e(f"  v_lshlrev_b32 v{110+2*i}, 16, v{100+i}")
        e(f"  v_and_b32 v{111+2*i}, s34, v{100+i}")
    e("  v_add_f32 v9, v110, v111")
    for i in range(2, 10):
        e(f"  v_add_f32 v9, v9, v{110+i}")
    wave_sum(9, 10, 36)
    e(f"  v_mul_f32 v9, {f2u(1.0/640):#x}, v9    ; mean (f32)")
    e("  v_sub_f32 v10, v110, v9")
    e("  v_mul_f32 v11, v10, v10")
    for i in range(1, 10):
        e(f"  v_sub_f32 v10, v{110+i}, v9")
        e("  v_fmac_f32 v11, v10, v10")
    wave_sum(11, 10, 36)
    e(f"  v_mul_f32 v11, {f2u(1.0/640):#x}, v11  ; var (f32)")
    rne(9, 9, 12)
    rne(11, 11, 12)
    e(f"  v_add_f32 v11, {f2u(1e-5):#x}, v11")
    rne(11, 11, 12)
    e("  v_sqrt_f32 v11, v11")
    e("  s_nop 0")
    rne(11, 11, 12)
    e("  v_rcp_f32 v11, v11")
    e("  s_nop 0")
    for i in range(10):
        e(f"  v_sub_f32 v{110+i}, v{110+i}, v9")
        rne(110+i, 110+i, 12)
        e(f"  v_mul_f32 v{110+i}, v{110+i}, v11")
        rne(110+i, 110+i, 12)
    e("  v_mul_u32_u24 v12, 2560, v2")
    e("  v_lshl_add_u32 v13, v1, 3, v12")
    for i in range(5):
        e(f"  ds_write_b64 v13, v[{110+2*i}:{111+2*i}] offset:{512*i}")
    e("  s_waitcnt lgkmcnt(0)")
    e("  v_lshl_add_u32 v13, v5, 2, v12")
    XB = 120
    for st in range(20):
        e(f"  ds_read_b32 v{XB+st}, v13 offset:{128*st}")
    for c in range(8):
        e(f"  v_mov_b32 v{100+c}, 0")
    e("  s_waitcnt vmcnt(0) lgkmcnt(0)")
    for st in range(20):
        for c in range(4):
            w = WB + 4*st + c
            e(f"  v_lshlrev_b32 v8, 16, v{w}")
            e(f"  v_and_b32 v9, s34, v{w}")
            e(f"  v_fmac_f32 v{100+2*c}, v8, v{XB+st}")
            e(f"  v_fmac_f32 v{101+2*c}, v9, v{XB+st}")
    e("  v_lshlrev_b32 v8, 8, v5        ; rowgroup*256")
    e("  v_lshl_add_u32 v8, v4, 5, v8   ; + j*32")
    e("  ds_write_b128 v8, v[100:103] offset:10240")
    e("  ds_write_b128 v8, v[104:107] offset:10256")
    e("  s_waitcnt lgkmcnt(0)")
    e("  s_barrier")
    e("  v_cmp_gt_u32 vcc, 64, v0")
    e("  s_and_saveexec_b64 s[36:37], vcc")
    e("  s_cbranch_execz K1_END")
    e("  v_lshlrev_b32 v8, 2, v0")
    for g in range(32):
        e(f"  ds_read_b32 v{16+g}, v8 offset:{10240+256*g}")
    e("  s_waitcnt lgkmcnt(0)")
    for g in range(1, 32):
        e(f"  v_add_f32 v16, v16, v{16+g}")
    e("  v_cvt_pk_bf16_f32 v16, v16, v16")
    e("  s_lshl_b32 s22, s22, 1")
    e("  v_lshl_add_u32 v8, v0, 1, s22")
    e(f"  buffer_store_short v16, v8, s[28:31], 0 offen offset:{WS_Y}")
    e("K1_END:")
    e("  s_endpgm")
    if standalone:
        desc(K1, 144)

K2 = "attn_kernel"
K2_WGS = H * NSPLIT
CH = SK // NSPLIT
CW = CH // 4
NTILE = CW // 16
assert NTILE % 2 == 0 and NTILE >= 2
K2_LDS = 25600
def gen_k2():
    nt = " nt" if NT else ""
    header(K2)
    e(f"  s_cmp_ge_u32 s2, {K2_WGS + 48}")
    e("  s_cbranch_scc1 K2_END")
    e(f"  s_cmp_lt_u32 s2, {K2_WGS}")
    e("  s_cbranch_scc1 K2_ATTN")
    e(f"  s_sub_u32 s2, s2, {K2_WGS - 96}")
    gen_k1(standalone=False)
    e("K2_ATTN:")
    e("  s_load_dwordx4 s[24:27], s[0:1], 8    ; k, v")
    e("  s_load_dwordx2 s[28:29], s[0:1], 88   ; ws")
    e("  s_load_dwordx2 s[44:45], s[0:1], 24   ; wq")
    e("  s_load_dwordx2 s[46:47], s[0:1], 0    ; x")
    e("  v_and_b32 v1, 63, v0")
    e("  v_lshrrev_b32 v2, 6, v0")
    e("  s_nop 0")
    e("  v_readfirstlane_b32 s20, v2")
    e("  s_waitcnt lgkmcnt(0)")
    srd(4, 24, KV_BYTES)
    srd(8, 26, KV_BYTES)
    srd(12, 28, WS_BYTES)
    srd(36, 44, 640 * 12288)
    srd(40, 46, 1280)
    sh = NSPLIT.bit_length() - 1
    e(f"  s_lshr_b32 s18, s2, {sh}      ; head")
    e(f"  s_and_b32 s19, s2, {NSPLIT-1} ; split")
    e(f"  s_mul_i32 s16, s18, {HEAD_BYTES}")
    e(f"  s_mul_i32 s17, s19, {CH*384}")
    e("  s_add_u32 s16, s16, s17")
    e(f"  s_mul_i32 s17, s20, {CW*384}")
    e("  s_add_u32 s16, s16, s17")
    e(f"  s_mov_b32 s21, {f2u(LOG2E):#x}")
    e(f"  s_mov_b32 s22, {f2u(SCALE):#x}")
    e(f"  s_mov_b32 s23, {f2u(-LOG2E):#x}")
    e("  s_mov_b32 s30, 0xffff0000")
    e("  s_mov_b32 s34, 0xffff0000")
    e("  v_lshrrev_b32 v3, 3, v1      ; r")
    e("  v_and_b32 v4, 7, v1          ; j")
    e("  v_lshlrev_b32 v8, 2, v1")
    e("  v_mul_u32_u24 v1, 384, v3")
    e("  v_lshl_add_u32 v1, v4, 4, v1 ; voff = r*384 + j*16")
    QB = 6
    M_, L_ = 18, 19
    ACC = 20
    SA_K, SA_V, SB_K, SB_V = 44, 68, 92, 116
    TMP = 140
    B0, B1 = 160, 44
    for i in range(5):
        e(f"  buffer_load_dword v{240+i}, v8, s[40:43], 0 offen offset:{256*i}")
    e("  v_lshl_add_u32 v5, v2, 3, v3  ; g = w*8+r")
    e("  v_mul_u32_u24 v6, 12288, v5")
    e("  s_mul_i32 s17, s18, 384")
    e("  v_lshlrev_b32 v7, 4, v4")
    e("  v_add3_u32 v6, v6, v7, s17    ; g*12288 + head*384 + j*16")
    def wq_batch(B, i):
        e("  s_mov_b32 s33, 0")
        for st in range(20):
            e(f"  buffer_load_dwordx4 v[{B+4*st}:{B+4*st+3}], v6, s[36:39], s33 offen offset:{128*i}")
            if st < 19:
                e("  s_add_u32 s33, s33, 393216")
    wq_batch(B0, 0)
    wq_batch(B1, 1)
    e("  s_waitcnt vmcnt(40)")
    for i in range(5):
        e(f"  v_lshlrev_b32 v{246+2*i}, 16, v{240+i}")
        e(f"  v_and_b32 v{247+2*i}, s34, v{240+i}")
    e("  v_add_f32 v9, v246, v247")
    for i in range(2, 10):
        e(f"  v_add_f32 v9, v9, v{246+i}")
    wave_sum(9, 10, 48)
    e(f"  v_mul_f32 v9, {f2u(1.0/640):#x}, v9    ; mean (f32)")
    e("  v_sub_f32 v10, v246, v9")
    e("  v_mul_f32 v11, v10, v10")
    for i in range(1, 10):
        e(f"  v_sub_f32 v10, v{246+i}, v9")
        e("  v_fmac_f32 v11, v10, v10")
    wave_sum(11, 10, 48)
    e(f"  v_mul_f32 v11, {f2u(1.0/640):#x}, v11  ; var (f32)")
    rne(9, 9, 12)
    rne(11, 11, 12)
    e(f"  v_add_f32 v11, {f2u(1e-5):#x}, v11")
    rne(11, 11, 12)
    e("  v_sqrt_f32 v11, v11")
    e("  s_nop 0")
    rne(11, 11, 12)
    e("  v_rcp_f32 v11, v11")
    e("  s_nop 0")
    for i in range(10):
        e(f"  v_sub_f32 v{246+i}, v{246+i}, v9")
        rne(246+i, 246+i, 12)
        e(f"  v_mul_f32 v{246+i}, v{246+i}, v11")
        rne(246+i, 246+i, 12)
    e("  v_mul_u32_u24 v12, 2560, v2")
    e("  v_lshlrev_b32 v13, 1, v8")
    e("  v_add_u32 v13, v13, v12       ; w*2560 + lane*8")
    for i in range(5):
        e(f"  ds_write_b64 v13, v[{246+2*i}:{247+2*i}] offset:{512*i}")
    e("  s_waitcnt lgkmcnt(0)")
    e("  v_lshl_add_u32 v13, v5, 2, v12")
    XB = 140
    for st in range(20):
        e(f"  ds_read_b32 v{XB+st}, v13 offset:{128*st}")
    for a in range(24):
        e(f"  v_mov_b32 v{ACC+a}, 0")
    def wq_fma(B, i):
        for st in range(20):
            for c in range(4):
                w = B + 4*st + c
                e(f"  v_lshlrev_b32 v8, 16, v{w}")
                e(f"  v_and_b32 v9, s34, v{w}")
                e(f"  v_fmac_f32 v{ACC+8*i+2*c}, v8, v{XB+st}")
                e(f"  v_fmac_f32 v{ACC+8*i+2*c+1}, v9, v{XB+st}")
    e("  s_waitcnt vmcnt(20) lgkmcnt(0)")
    wq_fma(B0, 0)
    wq_batch(B0, 2)
    e("  s_waitcnt vmcnt(20)")
    wq_fma(B1, 1)
    ISSUE_A_HERE = True
    def issue(KB, VB):
        for t in range(2):
            for i in range(3):
                e(f"  buffer_load_dwordx4 v[{KB+12*t+4*i}:{KB+12*t+4*i+3}], v1, s[4:7], s16 offen offset:{3072*t+128*i}{nt}")
        for t in range(2):
            for i in range(3):
                e(f"  buffer_load_dwordx4 v[{VB+12*t+4*i}:{VB+12*t+4*i+3}], v1, s[8:11], s16 offen offset:{3072*t+128*i}{nt}")
        e("  s_add_u32 s16, s16, 6144")

    def process(KB, VB, wk, wv):
        T = TMP
        e(f"  s_waitcnt vmcnt({wk})")
        for t in range(2):
            for i in range(3):
                d = T + 3*t + i
                k0 = KB + 12*t + 4*i
                e(f"  v_dot2_f32_bf16 v{d}, v{k0}, v{QB+4*i}, 0")
                for c in range(1, 4):
                    e(f"  v_dot2c_f32_bf16 v{d}, v{k0+c}, v{QB+4*i+c}")
        s0, s1 = T, T + 3
        e(f"  v_add_f32 v{s0}, v{s0}, v{s0+1}")
        e(f"  v_add_f32 v{s1}, v{s1}, v{s1+1}")
        e(f"  v_add_f32 v{s0}, v{s0}, v{s0+2}")
        e(f"  v_add_f32 v{s1}, v{s1}, v{s1+2}")
        for mode in ("quad_perm:[1,0,3,2]", "quad_perm:[2,3,0,1]", "row_half_mirror"):
            e("  s_nop 0")
            e(f"  v_add_f32_dpp v{s0}, v{s0}, v{s0} {mode} row_mask:0xf bank_mask:0xf")
            e(f"  v_add_f32_dpp v{s1}, v{s1}, v{s1} {mode} row_mask:0xf bank_mask:0xf")
        if MIMIC:
            e(f"  v_cvt_pk_bf16_f32 v{T+1}, v{s0}, v{s1}")
            e(f"  v_lshlrev_b32 v{s0}, 16, v{T+1}")
            e(f"  v_and_b32 v{s1}, s30, v{T+1}")
            e(f"  v_mul_f32 v{s0}, s22, v{s0}")
            e(f"  v_mul_f32 v{s1}, s22, v{s1}")
            e(f"  v_cvt_pk_bf16_f32 v{T+1}, v{s0}, v{s1}")
            e(f"  v_lshlrev_b32 v{s0}, 16, v{T+1}")
            e(f"  v_and_b32 v{s1}, s30, v{T+1}")
        else:
            e(f"  v_mul_f32 v{s0}, s22, v{s0}")
            e(f"  v_mul_f32 v{s1}, s22, v{s1}")
        mn, nm, ea = T + 6, T + 7, T + 8
        e(f"  v_max3_f32 v{mn}, v{M_}, v{s0}, v{s1}")
        e(f"  v_mul_f32 v{nm}, s23, v{mn}")
        e(f"  v_fma_f32 v{ea}, v{M_}, s21, v{nm}")
        e(f"  v_fma_f32 v{s0}, v{s0}, s21, v{nm}")
        e(f"  v_fma_f32 v{s1}, v{s1}, s21, v{nm}")
        e(f"  v_exp_f32 v{ea}, v{ea}")
        e(f"  v_exp_f32 v{s0}, v{s0}")
        e(f"  v_exp_f32 v{s1}, v{s1}")
        e(f"  v_mov_b32 v{M_}, v{mn}")
        e(f"  v_fma_f32 v{L_}, v{L_}, v{ea}, v{s0}")
        e(f"  v_add_f32 v{L_}, v{L_}, v{s1}")
        e(f"  s_waitcnt vmcnt({wv})")
        u = T + 10
        for i in range(3):
            for c in range(4):
                a = ACC + 8*i + 2*c
                v0_, v1_ = VB + 4*i + c, VB + 12 + 4*i + c
                e(f"  v_lshlrev_b32 v{u}, 16, v{v0_}")
                e(f"  v_and_b32 v{u+1}, s30, v{v0_}")
                e(f"  v_lshlrev_b32 v{u+2}, 16, v{v1_}")
                e(f"  v_and_b32 v{u+3}, s30, v{v1_}")
                e(f"  v_mul_f32 v{a}, v{a}, v{ea}")
                e(f"  v_mul_f32 v{a+1}, v{a+1}, v{ea}")
                e(f"  v_fmac_f32 v{a}, v{s0}, v{u}")
                e(f"  v_fmac_f32 v{a+1}, v{s0}, v{u+1}")
                e(f"  v_fmac_f32 v{a}, v{s1}, v{u+2}")
                e(f"  v_fmac_f32 v{a+1}, v{s1}, v{u+3}")

    issue(SA_K, SA_V)
    e("  s_waitcnt vmcnt(12)")
    wq_fma(B0, 2)
    e(f"  v_mul_u32_u24 v{TMP+4}, 768, v5")
    e(f"  v_lshl_add_u32 v{TMP+4}, v4, 5, v{TMP+4}")
    e("  s_barrier")
    for i in range(3):
        e(f"  ds_write_b128 v{TMP+4}, v[{ACC+8*i}:{ACC+8*i+3}] offset:{256+256*i}")
        e(f"  ds_write_b128 v{TMP+4}, v[{ACC+8*i+4}:{ACC+8*i+7}] offset:{256+256*i+16}")
    e("  s_waitcnt lgkmcnt(0)")
    e("  s_barrier")
    e(f"  v_lshlrev_b32 v{TMP+5}, 2, v0")
    e("  v_cmp_gt_u32 vcc, 192, v0")
    e("  s_and_saveexec_b64 s[32:33], vcc")
    e("  s_cbranch_execz K2_QSKIP")
    for g in range(32):
        e(f"  ds_read_b32 v{B0+g}, v{TMP+5} offset:{256+768*g}")
    e("  s_waitcnt lgkmcnt(0)")
    for g in range(1, 32):
        e(f"  v_add_f32 v{B0}, v{B0}, v{B0+g}")
    e(f"  v_cvt_pk_bf16_f32 v{B0}, v{B0}, v{B0}")
    e(f"  v_lshlrev_b32 v{TMP+5}, 1, v0")
    e(f"  ds_write_b16 v{TMP+5}, v{B0} offset:25088")
    e("K2_QSKIP:")
    e("  s_mov_b64 exec, s[32:33]")
    e("  s_waitcnt lgkmcnt(0)")
    e("  s_barrier")
    e(f"  v_lshlrev_b32 v{TMP+5}, 4, v4")
    for i in range(3):
        e(f"  ds_read_b128 v[{QB+4*i}:{QB+4*i+3}], v{TMP+5} offset:{25088+128*i}")
    e(f"  v_mov_b32 v{M_}, 0xff800000")
    e(f"  v_mov_b32 v{L_}, 0")
    for a in range(24):
        e(f"  v_mov_b32 v{ACC+a}, 0")
    e("  s_waitcnt lgkmcnt(0)")
    nloop = NTILE // 2 - 1
    if nloop > 0:
        e(f"  s_mov_b32 s17, {nloop}")
        e("K2_LOOP:")
        issue(SB_K, SB_V)
        process(SA_K, SA_V, 18, 12)
        issue(SA_K, SA_V)
        process(SB_K, SB_V, 18, 12)
        e("  s_sub_u32 s17, s17, 1")
        e("  s_cmp_lg_u32 s17, 0")
        e("  s_cbranch_scc1 K2_LOOP")
    issue(SB_K, SB_V)
    process(SA_K, SA_V, 18, 12)
    process(SB_K, SB_V, 6, 0)

    T = TMP
    e("  v_lshrrev_b32 v2, 3, v0")
    e(f"  v_lshlrev_b32 v{T}, 2, v2")
    e(f"  ds_write_b32 v{T}, v{M_}")
    e("  s_waitcnt lgkmcnt(0)")
    e("  s_barrier")
    e(f"  v_mov_b32 v{T+1}, 0")
    KB = SA_K
    for k in range(8):
        e(f"  ds_read_b128 v[{KB+4*k}:{KB+4*k+3}], v{T+1} offset:{16*k}")
    e("  s_waitcnt lgkmcnt(0)")
    e(f"  v_max3_f32 v{T+2}, v{KB}, v{KB+1}, v{KB+2}")
    for k in range(3, 31, 2):
        e(f"  v_max3_f32 v{T+2}, v{T+2}, v{KB+k}, v{KB+k+1}")
    e(f"  v_max_f32 v{T+2}, v{T+2}, v{KB+31}   ; M")
    e(f"  v_sub_f32 v{T+3}, v{M_}, v{T+2}")
    e(f"  v_mul_f32 v{T+3}, s21, v{T+3}")
    e(f"  v_exp_f32 v{T+3}, v{T+3}")
    e("  s_nop 0")
    for a in range(24):
        e(f"  v_mul_f32 v{ACC+a}, v{ACC+a}, v{T+3}")
    e(f"  v_mul_f32 v{L_}, v{L_}, v{T+3}")
    e(f"  ds_write_b32 v{T}, v{L_} offset:128")
    e(f"  v_mul_u32_u24 v{T+4}, 768, v2")
    e(f"  v_lshl_add_u32 v{T+4}, v4, 5, v{T+4}")
    for i in range(3):
        e(f"  ds_write_b128 v{T+4}, v[{ACC+8*i}:{ACC+8*i+3}] offset:{256+256*i}")
        e(f"  ds_write_b128 v{T+4}, v[{ACC+8*i+4}:{ACC+8*i+7}] offset:{256+256*i+16}")
    e("  s_waitcnt lgkmcnt(0)")
    e("  s_barrier")
    for k in range(8):
        e(f"  ds_read_b128 v[{KB+4*k}:{KB+4*k+3}], v{T+1} offset:{128+16*k}")
    e(f"  v_lshlrev_b32 v{T+5}, 2, v0")
    e("  v_cmp_gt_u32 vcc, 192, v0")
    e("  s_and_saveexec_b64 s[32:33], vcc")
    e("  s_cbranch_execz K2_SKIPO")
    VB = SB_K
    for g in range(32):
        e(f"  ds_read_b32 v{VB+g}, v{T+5} offset:{256+768*g}")
    e("  s_waitcnt lgkmcnt(0)")
    for g in range(1, 32):
        e(f"  v_add_f32 v{VB}, v{VB}, v{VB+g}")
    e(f"  s_mul_i32 s17, s2, 768")
    e(f"  v_add_u32 v{T+5}, s17, v{T+5}")
    e(f"  buffer_store_dword v{VB}, v{T+5}, s[12:15], 0 offen offset:0  ; placeholder")
    L.pop()
    e(f"  s_add_u32 s17, s17, {WS_O}")
    e(f"  v_lshlrev_b32 v{T+5}, 2, v0")
    e(f"  buffer_store_dword v{VB}, v{T+5}, s[12:15], s17 offen")
    e("K2_SKIPO:")
    e("  s_mov_b64 exec, s[32:33]")
    e("  s_waitcnt lgkmcnt(0)")
    for k in range(1, 32):
        e(f"  v_add_f32 v{KB}, v{KB}, v{KB+k}")
    e(f"  v_mul_f32 v{T+2}, s21, v{T+2}")
    e(f"  v_mov_b32 v{T+3}, v{KB}")
    e("  v_cmp_eq_u32 vcc, 0, v0")
    e("  s_and_saveexec_b64 s[32:33], vcc")
    e("  s_cbranch_execz K2_END")
    e(f"  s_lshl_b32 s17, s2, 3")
    e(f"  s_add_u32 s17, s17, {WS_ML}")
    e(f"  v_mov_b32 v{T+5}, 0")
    e(f"  buffer_store_dwordx2 v[{T+2}:{T+3}], v{T+5}, s[12:15], s17 offen")
    e("K2_END:")
    e("  s_endpgm")
    desc(K2, 256)

K3 = "proj_kernel"
K3_WGS = 160
K3_LDS = 256 + 3 * 640 * 4
def gen_k3():
    header(K3)
    e(f"  s_cmp_ge_u32 s2, {K3_WGS}")
    e("  s_cbranch_scc1 K3_END")
    e("  s_load_dwordx2 s[4:5], s[0:1], 32     ; wo")
    e("  s_load_dwordx2 s[6:7], s[0:1], 64     ; w2")
    e("  s_load_dwordx2 s[8:9], s[0:1], 88     ; ws")
    e("  s_waitcnt lgkmcnt(0)")
    srd(12, 8, WS_BYTES)
    e("  s_mov_b32 s16, s4")
    e("  s_mov_b32 s17, s5")
    e(f"  s_mov_b32 s18, {6144*1280}")
    e("  s_mul_i32 s20, s2, 48       ; row0")
    e("  s_cmp_lt_u32 s2, 128")
    e("  s_cbranch_scc1 K3_SEL")
    e("  s_mov_b32 s16, s6")
    e("  s_mov_b32 s17, s7")
    e(f"  s_mov_b32 s18, {1536*1280}")
    e("  s_sub_u32 s20, s2, 128")
    e("  s_mul_i32 s20, s20, 48")
    e("K3_SEL:")
    e("  s_and_b32 s17, s17, 0xffff")
    e("  s_mov_b32 s19, 0x00020000")
    e("  s_mov_b32 s30, 0xffff0000")
    e("  v_lshlrev_b32 v1, 4, v0")
    e("  s_mul_i32 s21, s20, 1280")
    e("  v_cmp_gt_u32 vcc, 240, v0")
    e("  s_and_saveexec_b64 s[32:33], vcc")
    e("  s_cbranch_execz K3_NOLOAD")
    WB = 16
    for st in range(16):
        e(f"  buffer_load_dwordx4 v[{WB+4*st}:{WB+4*st+3}], v1, s[16:19], s21 offen")
        if st < 15:
            e("  s_add_u32 s21, s21, 3840")
    e("K3_NOLOAD:")
    e("  s_mov_b64 exec, s[32:33]")
    e("  v_cmp_gt_u32 vcc, 48, v0")
    e("  s_and_saveexec_b64 s[32:33], vcc")
    e("  s_cbranch_execz K3_VECDONE")
    e("  s_cmp_lt_u32 s2, 128")
    e("  s_cbranch_scc0 K3_FFN")
    e("  s_lshr_b32 s22, s2, 2        ; head")
    e("  s_and_b32 s23, s2, 3")
    e("  s_mul_i32 s23, s23, 48       ; d0")
    e(f"  s_mul_i32 s24, s22, {NSPLIT*8}")
    e(f"  s_add_u32 s24, s24, {WS_ML}")
    e("  v_mov_b32 v2, 0")
    MB = 80
    for s in range(NSPLIT):
        e(f"  buffer_load_dwordx2 v[{MB+2*s}:{MB+2*s+1}], v2, s[12:15], s24 offen offset:{8*s}")
    e(f"  s_mul_i32 s25, s22, {NSPLIT*768}")
    e("  s_lshl_b32 s26, s23, 2")
    e("  s_add_u32 s25, s25, s26")
    e(f"  s_add_u32 s25, s25, {WS_O}")
    e("  v_lshlrev_b32 v3, 2, v0")
    OB = MB + 2 * NSPLIT
    for s in range(NSPLIT):
        e(f"  buffer_load_dword v{OB+s}, v3, s[12:15], s25 offen")
        e("  s_add_u32 s25, s25, 768")
    e(f"  s_waitcnt vmcnt({NSPLIT})")
    e(f"  v_mov_b32 v4, v{MB}")
    for s in range(1, NSPLIT):
        e(f"  v_max_f32 v4, v4, v{MB+2*s}")
    e("  v_mov_b32 v5, 0     ; L")
    e("  v_mov_b32 v6, 0     ; O")
    for s in range(NSPLIT):
        e(f"  v_sub_f32 v7, v{MB+2*s}, v4")
        e("  v_exp_f32 v7, v7")
        e("  s_nop 0")
        e(f"  v_fmac_f32 v5, v7, v{MB+2*s+1}")
        if s == 0:
            e("  s_waitcnt vmcnt(0)")
        e(f"  v_fmac_f32 v6, v7, v{OB+s}")
    e("  v_rcp_f32 v5, v5")
    e("  s_nop 0")
    e("  v_mul_f32 v6, v6, v5")
    rne(6, 6, 7)
    e("  s_branch K3_VECST")
    e("K3_FFN:")
    e("  v_lshlrev_b32 v3, 1, v0")
    e("  s_lshl_b32 s24, s20, 1")
    e(f"  s_add_u32 s25, s24, {WS_Y + 6144*2}")
    e(f"  s_add_u32 s26, s24, {WS_Y + 7680*2}")
    e("  buffer_load_ushort v4, v3, s[12:15], s25 offen")
    e("  buffer_load_ushort v5, v3, s[12:15], s26 offen")
    e("  s_waitcnt vmcnt(0)")
    e("  v_lshlrev_b32 v4, 16, v4   ; gate")
    e("  v_lshlrev_b32 v5, 16, v5   ; up")
    e(f"  v_mul_f32 v6, {f2u(-LOG2E):#x}, v4")
    e("  v_exp_f32 v6, v6")
    e("  s_nop 0")
    e("  v_add_f32 v6, 1.0, v6")
    e("  v_rcp_f32 v6, v6")
    e("  s_nop 0")
    e("  v_mul_f32 v6, v4, v6       ; silu")
    rne(6, 6, 7)
    e("  v_mul_f32 v6, v6, v5")
    rne(6, 6, 7)
    e("K3_VECST:")
    e("  v_lshlrev_b32 v3, 2, v0")
    e("  ds_write_b32 v3, v6")
    e("K3_VECDONE:")
    e("  s_mov_b64 exec, s[32:33]")
    e("  s_waitcnt lgkmcnt(0)")
    e("  s_barrier")
    e("  v_cmp_gt_u32 vcc, 240, v0")
    e("  s_and_saveexec_b64 s[32:33], vcc")
    e("  s_cbranch_execz K3_GDONE")
    e("  v_cmp_le_u32 vcc, 80, v0")
    e("  s_nop 1")
    e("  v_cndmask_b32 v2, 0, 4, vcc")
    e("  v_cmp_le_u32 vcc, 160, v0")
    e("  s_nop 1")
    e("  v_cndmask_b32 v2, v2, 8, vcc   ; rb*4")
    XB = 80
    for st in range(16):
        e(f"  ds_read_b32 v{XB+st}, v2 offset:{12*st}")
    for c in range(8):
        e(f"  v_mov_b32 v{4+c}, 0")
    e("  s_waitcnt vmcnt(0) lgkmcnt(0)")
    for st in range(16):
        for c in range(4):
            w = WB + 4*st + c
            e(f"  v_lshlrev_b32 v12, 16, v{w}")
            e(f"  v_and_b32 v13, s30, v{w}")
            e(f"  v_fmac_f32 v{4+2*c}, v12, v{XB+st}")
            e(f"  v_fmac_f32 v{5+2*c}, v13, v{XB+st}")
    e("  v_lshlrev_b32 v2, 5, v0")
    e("  ds_write_b128 v2, v[4:7] offset:256")
    e("  ds_write_b128 v2, v[8:11] offset:272")
    e("K3_GDONE:")
    e("  s_mov_b64 exec, s[32:33]")
    e("  s_waitcnt lgkmcnt(0)")
    e("  s_barrier")
    e("  v_lshlrev_b32 v2, 2, v0")
    for k in range(3):
        for rb in range(3):
            e(f"  ds_read_b32 v{16+3*k+rb}, v2 offset:{256 + rb*2560 + k*1024}")
    e("  s_waitcnt lgkmcnt(0)")
    for k in range(3):
        e(f"  v_add_f32 v{16+3*k}, v{16+3*k}, v{17+3*k}")
        e(f"  v_add_f32 v{16+3*k}, v{16+3*k}, v{18+3*k}")
    e("  s_mul_i32 s24, s2, 2560")
    e(f"  s_add_u32 s24, s24, {WS_PART}")
    e("  buffer_store_dword v16, v2, s[12:15], s24 offen")
    e("  buffer_store_dword v19, v2, s[12:15], s24 offen offset:1024")
    e("  v_cmp_gt_u32 vcc, 128, v0")
    e("  s_and_saveexec_b64 s[32:33], vcc")
    e("  s_cbranch_execz K3_END")
    e("  buffer_store_dword v22, v2, s[12:15], s24 offen offset:2048")
    e("K3_END:")
    e("  s_endpgm")
    desc(K3, 128)

K4 = "final_kernel"
K4_WGS = 10
K4_LDS = 2 * 4 * 64 * 4
def gen_k4():
    header(K4)
    e(f"  s_cmp_ge_u32 s2, {K4_WGS}")
    e("  s_cbranch_scc1 K4_END")
    e("  s_load_dwordx2 s[4:5], s[0:1], 0      ; x")
    e("  s_load_dwordx2 s[6:7], s[0:1], 72     ; out")
    e("  s_load_dwordx2 s[8:9], s[0:1], 88     ; ws")
    e("  v_and_b32 v1, 63, v0")
    e("  v_lshrrev_b32 v2, 6, v0")
    e("  s_nop 0")
    e("  v_readfirstlane_b32 s20, v2")
    e("  s_waitcnt lgkmcnt(0)")
    srd(12, 8, WS_BYTES)
    srd(16, 4, 1280)
    srd(24, 6, 1280)
    e("  s_lshl_b32 s21, s2, 8")
    e("  v_lshl_add_u32 v3, v1, 2, s21")
    e("  s_mul_i32 s22, s20, 32*2560")
    e(f"  s_add_u32 s22, s22, {WS_PART}")
    for k in range(32):
        e(f"  buffer_load_dword v{16+k}, v3, s[12:15], s22 offen")
        e("  s_add_u32 s22, s22, 2560")
    e("  s_mul_i32 s22, s20, 8*2560")
    e(f"  s_add_u32 s22, s22, {WS_PART + 128*2560}")
    for k in range(8):
        e(f"  buffer_load_dword v{48+k}, v3, s[12:15], s22 offen")
        e("  s_add_u32 s22, s22, 2560")
    e("  s_waitcnt vmcnt(8)")
    for k in range(1, 32):
        e(f"  v_add_f32 v16, v16, v{16+k}")
    e("  s_waitcnt vmcnt(0)")
    for k in range(1, 8):
        e(f"  v_add_f32 v48, v48, v{48+k}")
    e("  v_lshlrev_b32 v4, 2, v0    ; (wave*64+lane)*4")
    e("  ds_write_b32 v4, v16")
    e("  ds_write_b32 v4, v48 offset:1024")
    e("  s_waitcnt lgkmcnt(0)")
    e("  s_barrier")
    e("  v_cmp_gt_u32 vcc, 64, v0")
    e("  s_and_saveexec_b64 s[32:33], vcc")
    e("  s_cbranch_execz K4_END")
    for w in range(4):
        e(f"  ds_read_b32 v{16+w}, v4 offset:{256*w}")
        e(f"  ds_read_b32 v{20+w}, v4 offset:{1024+256*w}")
    e("  s_lshl_b32 s21, s2, 7")
    e("  v_lshl_add_u32 v5, v1, 1, s21")
    e("  buffer_load_ushort v6, v5, s[16:19], 0 offen")
    e("  s_waitcnt lgkmcnt(0)")
    e("  v_add_f32 v16, v16, v17")
    e("  v_add_f32 v18, v18, v19")
    e("  v_add_f32 v16, v16, v18    ; s")
    e("  v_add_f32 v20, v20, v21")
    e("  v_add_f32 v22, v22, v23")
    e("  v_add_f32 v20, v20, v22    ; f")
    rne(16, 16, 7)
    rne(20, 20, 7)
    e(f"  v_mul_f32 v8, {f2u(-LOG2E):#x}, v20")
    e("  v_exp_f32 v8, v8")
    e("  s_nop 0")
    e("  v_add_f32 v8, 1.0, v8")
    e("  v_rcp_f32 v8, v8")
    e("  s_nop 0")
    e("  v_mul_f32 v8, v20, v8")
    rne(8, 8, 7)
    e("  v_mul_f32 v8, v16, v8")
    rne(8, 8, 7)
    e("  s_waitcnt vmcnt(0)")
    e("  v_lshlrev_b32 v6, 16, v6")
    e("  v_add_f32 v8, v6, v8")
    e("  v_cvt_pk_bf16_f32 v8, v8, v8")
    e("  buffer_store_short v8, v5, s[24:27], 0 offen")
    e("K4_END:")
    e("  s_endpgm")
    desc(K4, 64)

top = []
top.append(f"; @launch kernel={K2} grid=({K2_WGS + 48},1,1) block=(256,1,1) lds={K2_LDS}")
top.append(f"; @launch kernel={K3} grid=({K3_WGS},1,1) block=(256,1,1) lds={K3_LDS}")
top.append(f"; @launch kernel={K4} grid=({K4_WGS},1,1) block=(256,1,1) lds={K4_LDS}")
top.append('.amdgcn_target "amdgcn-amd-amdhsa--gfx950"')
top.append(".text")
gen_k2(); gen_k3(); gen_k4()
src = "\n".join(top) + "\n" + "\n".join(L) + "\n" + '.section .rodata,"a"\n' + "\n".join(KD) + "\n"
open(OUT, "w").write(src)
print("wrote", OUT, len(src), "bytes")
```

```python
import sys

NAME = "recurrent_scan__mha_block_cached__glu_gated_swiglu__decode"
OUT = f"cdna_kernels/{NAME}.s"

NSPLIT = int(sys.argv[1]) if len(sys.argv) > 1 else 16
NT = int(sys.argv[2]) if len(sys.argv) > 2 else 1
MIMIC = int(sys.argv[3]) if len(sys.argv) > 3 else 1
if len(sys.argv) > 4:
    OUT = sys.argv[4]

H, SK, DH, D, F = 32, 32768, 192, 640, 1536
KV_BYTES = H * SK * DH * 2
HEAD_BYTES = SK * DH * 2
WS_BYTES = 1610612736
WS_Y = 0
WS_ML = 0x10000
WS_O = 0x20000
WS_PART = 0x400000
LOG2E = 1.4426950408889634
SCALE = 192 ** -0.5

import struct
def f2u(x):
    return struct.unpack("<I", struct.pack("<f", x))[0]

L = []
def e(s=""):
    L.append(s)

def srd(dst, ptr, nbytes):
    e(f"  s_mov_b32 s{dst}, s{ptr}")
    e(f"  s_and_b32 s{dst+1}, s{ptr+1}, 0xffff")
    e(f"  s_mov_b32 s{dst+2}, {nbytes}")
    e(f"  s_mov_b32 s{dst+3}, 0x00020000")

def rne(dst, src, tmp):
    e(f"  v_cvt_pk_bf16_f32 v{tmp}, v{src}, v{src}")
    e(f"  v_lshlrev_b32 v{dst}, 16, v{tmp}")

def wave_sum(v, t, s0):
    e("  s_nop 1")
    e(f"  v_add_f32_dpp v{v}, v{v}, v{v} quad_perm:[1,0,3,2] row_mask:0xf bank_mask:0xf")
    e("  s_nop 1")
    e(f"  v_add_f32_dpp v{v}, v{v}, v{v} quad_perm:[2,3,0,1] row_mask:0xf bank_mask:0xf")
    e("  s_nop 1")
    e(f"  v_add_f32_dpp v{v}, v{v}, v{v} row_half_mirror row_mask:0xf bank_mask:0xf")
    e("  s_nop 1")
    e(f"  v_add_f32_dpp v{v}, v{v}, v{v} row_mirror row_mask:0xf bank_mask:0xf")
    e("  s_nop 1")
    for k in range(4):
        e(f"  v_readlane_b32 s{s0+k}, v{v}, {16*k}")
    e("  s_nop 3")
    e(f"  v_mov_b32 v{v}, s{s0}")
    e(f"  v_add_f32 v{v}, s{s0+1}, v{v}")
    e(f"  v_add_f32 v{v}, s{s0+2}, v{v}")
    e(f"  v_add_f32 v{v}, s{s0+3}, v{v}")

def header(kname):
    e(f".globl {kname}")
    e(".p2align 8")
    e(f".type {kname},@function")
    e(f"{kname}:")

KD = []
def desc(kname, vgpr, sgpr=64):
    acc = (vgpr + 3) // 4 * 4
    KD.append(f""".p2align 6
.amdhsa_kernel {kname}
  .amdhsa_next_free_vgpr {vgpr}
  .amdhsa_next_free_sgpr {sgpr}
  .amdhsa_accum_offset {acc}
  .amdhsa_group_segment_fixed_size 0
  .amdhsa_kernarg_size 96
  .amdhsa_user_sgpr_count 2
  .amdhsa_user_sgpr_kernarg_segment_ptr 1
  .amdhsa_system_sgpr_workgroup_id_x 1
.end_amdhsa_kernel""")

K1 = "prep_kernel"
K1_WGS = 144
K1_LDS = 4 * 2560 + 32 * 256
def gen_k1(standalone=True):
    if standalone:
        header(K1)
        e(f"  s_cmp_ge_u32 s2, {K1_WGS}")
        e("  s_cbranch_scc1 K1_END")
    e("  s_load_dwordx2 s[4:5], s[0:1], 0      ; x")
    e("  s_load_dwordx2 s[6:7], s[0:1], 24     ; wq")
    e("  s_load_dwordx4 s[8:11], s[0:1], 48    ; w1, w3")
    e("  s_load_dwordx2 s[12:13], s[0:1], 88   ; ws")
    e("  s_waitcnt lgkmcnt(0)")
    e("  s_mov_b32 s14, s6")
    e("  s_mov_b32 s15, s7")
    e("  s_mov_b32 s20, 12288")
    e("  s_lshl_b32 s21, s2, 6")
    e("  s_mov_b32 s22, s21")
    e("  s_cmp_lt_u32 s2, 96")
    e("  s_cbranch_scc1 K1_SEL")
    e("  s_mov_b32 s14, s8")
    e("  s_mov_b32 s15, s9")
    e("  s_mov_b32 s20, 3072")
    e("  s_sub_u32 s21, s2, 96")
    e("  s_lshl_b32 s21, s21, 6")
    e("  s_add_u32 s22, s21, 6144")
    e("  s_cmp_lt_u32 s2, 120")
    e("  s_cbranch_scc1 K1_SEL")
    e("  s_mov_b32 s14, s10")
    e("  s_mov_b32 s15, s11")
    e("  s_sub_u32 s21, s2, 120")
    e("  s_lshl_b32 s21, s21, 6")
    e("  s_add_u32 s22, s21, 7680")
    e("K1_SEL:")
    e("  s_mul_i32 s23, s20, 640")
    e("  s_mov_b32 s16, s14")
    e("  s_and_b32 s17, s15, 0xffff")
    e("  s_mov_b32 s18, s23")
    e("  s_mov_b32 s19, 0x00020000   ; SRD W = s[16:19]")
    srd(24, 4, 1280)
    srd(28, 12, WS_BYTES)
    e("  v_and_b32 v1, 63, v0          ; lane")
    e("  v_lshrrev_b32 v2, 6, v0       ; wave")
    e("  v_lshrrev_b32 v3, 3, v1       ; rg")
    e("  v_and_b32 v4, 7, v1           ; j")
    e("  v_lshl_add_u32 v5, v2, 3, v3")
    e("  v_mul_lo_u32 v6, v5, s20      ; row0*ld")
    e("  v_lshlrev_b32 v7, 4, v4       ; j*16")
    e("  s_lshl_b32 s3, s21, 1         ; col0*2")
    e("  v_add3_u32 v6, v6, v7, s3     ; voff")
    e("  s_lshl_b32 s32, s20, 5        ; 32*ld")
    e("  s_mov_b32 s33, 0")
    WB = 16
    e("  v_lshlrev_b32 v8, 2, v1       ; lane*4")
    for i in range(5):
        e(f"  buffer_load_dword v{100+i}, v8, s[24:27], 0 offen offset:{256*i}")
    for st in range(20):
        e(f"  buffer_load_dwordx4 v[{WB+4*st}:{WB+4*st+3}], v6, s[16:19], s33 offen")
        if st < 19:
            e("  s_add_u32 s33, s33, s32")
    e("  s_waitcnt vmcnt(20)")
    e("  s_mov_b32 s34, 0xffff0000")
    for i in range(5):
        e(f"  v_lshlrev_b32 v{110+2*i}, 16, v{100+i}")
        e(f"  v_and_b32 v{111+2*i}, s34, v{100+i}")
    e("  v_add_f32 v9, v110, v111")
    for i in range(2, 10):
        e(f"  v_add_f32 v9, v9, v{110+i}")
    wave_sum(9, 10, 36)
    e(f"  v_mul_f32 v9, {f2u(1.0/640):#x}, v9    ; mean (f32)")
    e("  v_sub_f32 v10, v110, v9")
    e("  v_mul_f32 v11, v10, v10")
    for i in range(1, 10):
        e(f"  v_sub_f32 v10, v{110+i}, v9")
        e("  v_fmac_f32 v11, v10, v10")
    wave_sum(11, 10, 36)
    e(f"  v_mul_f32 v11, {f2u(1.0/640):#x}, v11  ; var (f32)")
    rne(9, 9, 12)
    rne(11, 11, 12)
    e(f"  v_add_f32 v11, {f2u(1e-5):#x}, v11")
    rne(11, 11, 12)
    e("  v_sqrt_f32 v11, v11")
    e("  s_nop 0")
    rne(11, 11, 12)
    e("  v_rcp_f32 v11, v11")
    e("  s_nop 0")
    for i in range(10):
        e(f"  v_sub_f32 v{110+i}, v{110+i}, v9")
        rne(110+i, 110+i, 12)
        e(f"  v_mul_f32 v{110+i}, v{110+i}, v11")
        rne(110+i, 110+i, 12)
    e("  v_mul_u32_u24 v12, 2560, v2")
    e("  v_lshl_add_u32 v13, v1, 3, v12")
    for i in range(5):
        e(f"  ds_write_b64 v13, v[{110+2*i}:{111+2*i}] offset:{512*i}")
    e("  s_waitcnt lgkmcnt(0)")
    e("  v_lshl_add_u32 v13, v5, 2, v12")
    XB = 120
    for st in range(20):
        e(f"  ds_read_b32 v{XB+st}, v13 offset:{128*st}")
    for c in range(8):
        e(f"  v_mov_b32 v{100+c}, 0")
    e("  s_waitcnt vmcnt(0) lgkmcnt(0)")
    for st in range(20):
        for c in range(4):
            w = WB + 4*st + c
            e(f"  v_lshlrev_b32 v8, 16, v{w}")
            e(f"  v_and_b32 v9, s34, v{w}")
            e(f"  v_fmac_f32 v{100+2*c}, v8, v{XB+st}")
            e(f"  v_fmac_f32 v{101+2*c}, v9, v{XB+st}")
    e("  v_lshlrev_b32 v8, 8, v5        ; rowgroup*256")
    e("  v_lshl_add_u32 v8, v4, 5, v8   ; + j*32")
    e("  ds_write_b128 v8, v[100:103] offset:10240")
    e("  ds_write_b128 v8, v[104:107] offset:10256")
    e("  s_waitcnt lgkmcnt(0)")
    e("  s_barrier")
    e("  v_cmp_gt_u32 vcc, 64, v0")
    e("  s_and_saveexec_b64 s[36:37], vcc")
    e("  s_cbranch_execz K1_END")
    e("  v_lshlrev_b32 v8, 2, v0")
    for g in range(32):
        e(f"  ds_read_b32 v{16+g}, v8 offset:{10240+256*g}")
    e("  s_waitcnt lgkmcnt(0)")
    for g in range(1, 32):
        e(f"  v_add_f32 v16, v16, v{16+g}")
    e("  v_cvt_pk_bf16_f32 v16, v16, v16")
    e("  s_lshl_b32 s22, s22, 1")
    e("  v_lshl_add_u32 v8, v0, 1, s22")
    e(f"  buffer_store_short v16, v8, s[28:31], 0 offen offset:{WS_Y}")
    e("K1_END:")
    e("  s_endpgm")
    if standalone:
        desc(K1, 144)

K2 = "attn_kernel"
K2_WGS = H * NSPLIT
CH = SK // NSPLIT
CW = CH // 4
NTILE = CW // 16
assert NTILE % 2 == 0 and NTILE >= 2
K2_LDS = 256 + 32 * 768
def gen_k2():
    nt = " nt" if NT else ""
    header(K2)
    e(f"  s_cmp_ge_u32 s2, {K2_WGS}")
    e("  s_cbranch_scc1 K2_END")
    e("  s_load_dwordx4 s[24:27], s[0:1], 8    ; k, v")
    e("  s_load_dwordx2 s[28:29], s[0:1], 88   ; ws")
    e("  v_and_b32 v1, 63, v0")
    e("  v_lshrrev_b32 v2, 6, v0")
    e("  s_nop 0")
    e("  v_readfirstlane_b32 s20, v2")
    e("  s_waitcnt lgkmcnt(0)")
    srd(4, 24, KV_BYTES)
    srd(8, 26, KV_BYTES)
    srd(12, 28, WS_BYTES)
    sh = NSPLIT.bit_length() - 1
    e(f"  s_lshr_b32 s18, s2, {sh}      ; head")
    e(f"  s_and_b32 s19, s2, {NSPLIT-1} ; split")
    e(f"  s_mul_i32 s16, s18, {HEAD_BYTES}")
    e(f"  s_mul_i32 s17, s19, {CH*384}")
    e("  s_add_u32 s16, s16, s17")
    e(f"  s_mul_i32 s17, s20, {CW*384}")
    e("  s_add_u32 s16, s16, s17")
    e(f"  s_mov_b32 s21, {f2u(LOG2E):#x}")
    e(f"  s_mov_b32 s22, {f2u(SCALE):#x}")
    e(f"  s_mov_b32 s23, {f2u(-LOG2E):#x}")
    e("  s_mov_b32 s30, 0xffff0000")
    e("  v_lshrrev_b32 v3, 3, v1      ; r")
    e("  v_and_b32 v4, 7, v1          ; j")
    e("  v_mul_u32_u24 v1, 384, v3")
    e("  v_lshl_add_u32 v1, v4, 4, v1 ; voff = r*384 + j*16")
    e("  s_mul_i32 s17, s18, 384")
    e("  v_lshl_add_u32 v5, v4, 4, s17")
    for i in range(3):
        e(f"  buffer_load_dwordx4 v[{2+4*i+4}:{2+4*i+7}], v5, s[12:15], 0 offen offset:{WS_Y + 128*i}")
    QB = 6
    M_, L_ = 18, 19
    ACC = 20
    SA_K, SA_V, SB_K, SB_V = 44, 68, 92, 116
    TMP = 140
    e(f"  v_mov_b32 v{M_}, 0xff800000")
    e(f"  v_mov_b32 v{L_}, 0")
    for a in range(24):
        e(f"  v_mov_b32 v{ACC+a}, 0")

    def issue(KB, VB):
        for t in range(2):
            for i in range(3):
                e(f"  buffer_load_dwordx4 v[{KB+12*t+4*i}:{KB+12*t+4*i+3}], v1, s[4:7], s16 offen offset:{3072*t+128*i}{nt}")
        for t in range(2):
            for i in range(3):
                e(f"  buffer_load_dwordx4 v[{VB+12*t+4*i}:{VB+12*t+4*i+3}], v1, s[8:11], s16 offen offset:{3072*t+128*i}{nt}")
        e("  s_add_u32 s16, s16, 6144")

    def process(KB, VB, wk, wv):
        T = TMP
        e(f"  s_waitcnt vmcnt({wk})")
        for t in range(2):
            for i in range(3):
                d = T + 3*t + i
                k0 = KB + 12*t + 4*i
                e(f"  v_dot2_f32_bf16 v{d}, v{k0}, v{QB+4*i}, 0")
                for c in range(1, 4):
                    e(f"  v_dot2c_f32_bf16 v{d}, v{k0+c}, v{QB+4*i+c}")
        s0, s1 = T, T + 3
        e(f"  v_add_f32 v{s0}, v{s0}, v{s0+1}")
        e(f"  v_add_f32 v{s1}, v{s1}, v{s1+1}")
        e(f"  v_add_f32 v{s0}, v{s0}, v{s0+2}")
        e(f"  v_add_f32 v{s1}, v{s1}, v{s1+2}")
        for mode in ("quad_perm:[1,0,3,2]", "quad_perm:[2,3,0,1]", "row_half_mirror"):
            e("  s_nop 0")
            e(f"  v_add_f32_dpp v{s0}, v{s0}, v{s0} {mode} row_mask:0xf bank_mask:0xf")
            e(f"  v_add_f32_dpp v{s1}, v{s1}, v{s1} {mode} row_mask:0xf bank_mask:0xf")
        if MIMIC:
            e(f"  v_cvt_pk_bf16_f32 v{T+1}, v{s0}, v{s1}")
            e(f"  v_lshlrev_b32 v{s0}, 16, v{T+1}")
            e(f"  v_and_b32 v{s1}, s30, v{T+1}")
            e(f"  v_mul_f32 v{s0}, s22, v{s0}")
            e(f"  v_mul_f32 v{s1}, s22, v{s1}")
            e(f"  v_cvt_pk_bf16_f32 v{T+1}, v{s0}, v{s1}")
            e(f"  v_lshlrev_b32 v{s0}, 16, v{T+1}")
            e(f"  v_and_b32 v{s1}, s30, v{T+1}")
        else:
            e(f"  v_mul_f32 v{s0}, s22, v{s0}")
            e(f"  v_mul_f32 v{s1}, s22, v{s1}")
        mn, nm, ea = T + 6, T + 7, T + 8
        e(f"  v_max3_f32 v{mn}, v{M_}, v{s0}, v{s1}")
        e(f"  v_mul_f32 v{nm}, s23, v{mn}")
        e(f"  v_fma_f32 v{ea}, v{M_}, s21, v{nm}")
        e(f"  v_fma_f32 v{s0}, v{s0}, s21, v{nm}")
        e(f"  v_fma_f32 v{s1}, v{s1}, s21, v{nm}")
        e(f"  v_exp_f32 v{ea}, v{ea}")
        e(f"  v_exp_f32 v{s0}, v{s0}")
        e(f"  v_exp_f32 v{s1}, v{s1}")
        e(f"  v_mov_b32 v{M_}, v{mn}")
        e(f"  v_fma_f32 v{L_}, v{L_}, v{ea}, v{s0}")
        e(f"  v_add_f32 v{L_}, v{L_}, v{s1}")
        e(f"  s_waitcnt vmcnt({wv})")
        u = T + 10
        for i in range(3):
            for c in range(4):
                a = ACC + 8*i + 2*c
                v0_, v1_ = VB + 4*i + c, VB + 12 + 4*i + c
                e(f"  v_lshlrev_b32 v{u}, 16, v{v0_}")
                e(f"  v_and_b32 v{u+1}, s30, v{v0_}")
                e(f"  v_lshlrev_b32 v{u+2}, 16, v{v1_}")
                e(f"  v_and_b32 v{u+3}, s30, v{v1_}")
                e(f"  v_mul_f32 v{a}, v{a}, v{ea}")
                e(f"  v_mul_f32 v{a+1}, v{a+1}, v{ea}")
                e(f"  v_fmac_f32 v{a}, v{s0}, v{u}")
                e(f"  v_fmac_f32 v{a+1}, v{s0}, v{u+1}")
                e(f"  v_fmac_f32 v{a}, v{s1}, v{u+2}")
                e(f"  v_fmac_f32 v{a+1}, v{s1}, v{u+3}")

    issue(SA_K, SA_V)
    nloop = NTILE // 2 - 1
    if nloop > 0:
        e(f"  s_mov_b32 s17, {nloop}")
        e("K2_LOOP:")
        issue(SB_K, SB_V)
        process(SA_K, SA_V, 18, 12)
        issue(SA_K, SA_V)
        process(SB_K, SB_V, 18, 12)
        e("  s_sub_u32 s17, s17, 1")
        e("  s_cmp_lg_u32 s17, 0")
        e("  s_cbranch_scc1 K2_LOOP")
    issue(SB_K, SB_V)
    process(SA_K, SA_V, 18, 12)
    process(SB_K, SB_V, 6, 0)

    T = TMP
    e("  v_lshrrev_b32 v2, 3, v0")
    e(f"  v_lshlrev_b32 v{T}, 2, v2")
    e(f"  ds_write_b32 v{T}, v{M_}")
    e("  s_waitcnt lgkmcnt(0)")
    e("  s_barrier")
    e(f"  v_mov_b32 v{T+1}, 0")
    KB = SA_K
    for k in range(8):
        e(f"  ds_read_b128 v[{KB+4*k}:{KB+4*k+3}], v{T+1} offset:{16*k}")
    e("  s_waitcnt lgkmcnt(0)")
    e(f"  v_max3_f32 v{T+2}, v{KB}, v{KB+1}, v{KB+2}")
    for k in range(3, 31, 2):
        e(f"  v_max3_f32 v{T+2}, v{T+2}, v{KB+k}, v{KB+k+1}")
    e(f"  v_max_f32 v{T+2}, v{T+2}, v{KB+31}   ; M")
    e(f"  v_sub_f32 v{T+3}, v{M_}, v{T+2}")
    e(f"  v_mul_f32 v{T+3}, s21, v{T+3}")
    e(f"  v_exp_f32 v{T+3}, v{T+3}")
    e("  s_nop 0")
    for a in range(24):
        e(f"  v_mul_f32 v{ACC+a}, v{ACC+a}, v{T+3}")
    e(f"  v_mul_f32 v{L_}, v{L_}, v{T+3}")
    e(f"  ds_write_b32 v{T}, v{L_} offset:128")
    e(f"  v_mul_u32_u24 v{T+4}, 768, v2")
    e(f"  v_lshl_add_u32 v{T+4}, v4, 5, v{T+4}")
    for i in range(3):
        e(f"  ds_write_b128 v{T+4}, v[{ACC+8*i}:{ACC+8*i+3}] offset:{256+256*i}")
        e(f"  ds_write_b128 v{T+4}, v[{ACC+8*i+4}:{ACC+8*i+7}] offset:{256+256*i+16}")
    e("  s_waitcnt lgkmcnt(0)")
    e("  s_barrier")
    for k in range(8):
        e(f"  ds_read_b128 v[{KB+4*k}:{KB+4*k+3}], v{T+1} offset:{128+16*k}")
    e(f"  v_lshlrev_b32 v{T+5}, 2, v0")
    e("  v_cmp_gt_u32 vcc, 192, v0")
    e("  s_and_saveexec_b64 s[32:33], vcc")
    e("  s_cbranch_execz K2_SKIPO")
    VB = SB_K
    for g in range(32):
        e(f"  ds_read_b32 v{VB+g}, v{T+5} offset:{256+768*g}")
    e("  s_waitcnt lgkmcnt(0)")
    for g in range(1, 32):
        e(f"  v_add_f32 v{VB}, v{VB}, v{VB+g}")
    e(f"  s_mul_i32 s17, s2, 768")
    e(f"  v_add_u32 v{T+5}, s17, v{T+5}")
    e(f"  buffer_store_dword v{VB}, v{T+5}, s[12:15], 0 offen offset:0  ; placeholder")
    L.pop()
    e(f"  s_add_u32 s17, s17, {WS_O}")
    e(f"  v_lshlrev_b32 v{T+5}, 2, v0")
    e(f"  buffer_store_dword v{VB}, v{T+5}, s[12:15], s17 offen")
    e("K2_SKIPO:")
    e("  s_mov_b64 exec, s[32:33]")
    e("  s_waitcnt lgkmcnt(0)")
    for k in range(1, 32):
        e(f"  v_add_f32 v{KB}, v{KB}, v{KB+k}")
    e(f"  v_mul_f32 v{T+2}, s21, v{T+2}")
    e(f"  v_mov_b32 v{T+3}, v{KB}")
    e("  v_cmp_eq_u32 vcc, 0, v0")
    e("  s_and_saveexec_b64 s[32:33], vcc")
    e("  s_cbranch_execz K2_END")
    e(f"  s_lshl_b32 s17, s2, 3")
    e(f"  s_add_u32 s17, s17, {WS_ML}")
    e(f"  v_mov_b32 v{T+5}, 0")
    e(f"  buffer_store_dwordx2 v[{T+2}:{T+3}], v{T+5}, s[12:15], s17 offen")
    e("K2_END:")
    e("  s_endpgm")
    desc(K2, 156)

K3 = "proj_kernel"
K3_WGS = 160
K3_LDS = 256 + 3 * 640 * 4
def gen_k3():
    header(K3)
    e(f"  s_cmp_ge_u32 s2, {K3_WGS}")
    e("  s_cbranch_scc1 K3_END")
    e("  s_load_dwordx2 s[4:5], s[0:1], 32     ; wo")
    e("  s_load_dwordx2 s[6:7], s[0:1], 64     ; w2")
    e("  s_load_dwordx2 s[8:9], s[0:1], 88     ; ws")
    e("  s_waitcnt lgkmcnt(0)")
    srd(12, 8, WS_BYTES)
    e("  s_mov_b32 s16, s4")
    e("  s_mov_b32 s17, s5")
    e(f"  s_mov_b32 s18, {6144*1280}")
    e("  s_mul_i32 s20, s2, 48       ; row0")
    e("  s_cmp_lt_u32 s2, 128")
    e("  s_cbranch_scc1 K3_SEL")
    e("  s_mov_b32 s16, s6")
    e("  s_mov_b32 s17, s7")
    e(f"  s_mov_b32 s18, {1536*1280}")
    e("  s_sub_u32 s20, s2, 128")
    e("  s_mul_i32 s20, s20, 48")
    e("K3_SEL:")
    e("  s_and_b32 s17, s17, 0xffff")
    e("  s_mov_b32 s19, 0x00020000")
    e("  s_mov_b32 s30, 0xffff0000")
    WB = 16
    def k3_bulk(tag):
        e("  v_lshlrev_b32 v1, 4, v0")
        e("  s_mul_i32 s21, s20, 1280")
        e("  v_cmp_gt_u32 vcc, 240, v0")
        e("  s_and_saveexec_b64 s[34:35], vcc")
        e(f"  s_cbranch_execz K3_NOLOAD{tag}")
        for st in range(16):
            e(f"  buffer_load_dwordx4 v[{WB+4*st}:{WB+4*st+3}], v1, s[16:19], s21 offen")
            if st < 15:
                e("  s_add_u32 s21, s21, 3840")
        e(f"K3_NOLOAD{tag}:")
        e("  s_mov_b64 exec, s[34:35]")
    e("  v_cmp_gt_u32 vcc, 48, v0")
    e("  s_and_saveexec_b64 s[32:33], vcc")
    e("  s_cbranch_execz K3_LATEBULK")
    e("  s_mov_b64 s[36:37], exec")
    e("  s_cmp_lt_u32 s2, 128")
    e("  s_cbranch_scc0 K3_FFN")
    e("  s_lshr_b32 s22, s2, 2        ; head")
    e("  s_and_b32 s23, s2, 3")
    e("  s_mul_i32 s23, s23, 48       ; d0")
    e(f"  s_mul_i32 s24, s22, {NSPLIT*8}")
    e(f"  s_add_u32 s24, s24, {WS_ML}")
    e("  v_mov_b32 v2, 0")
    MB = 80
    for s in range(NSPLIT):
        e(f"  buffer_load_dwordx2 v[{MB+2*s}:{MB+2*s+1}], v2, s[12:15], s24 offen offset:{8*s}")
    e(f"  s_mul_i32 s25, s22, {NSPLIT*768}")
    e("  s_lshl_b32 s26, s23, 2")
    e("  s_add_u32 s25, s25, s26")
    e(f"  s_add_u32 s25, s25, {WS_O}")
    e("  v_lshlrev_b32 v3, 2, v0")
    OB = MB + 2 * NSPLIT
    for s in range(NSPLIT):
        e(f"  buffer_load_dword v{OB+s}, v3, s[12:15], s25 offen")
        e("  s_add_u32 s25, s25, 768")
    e("  s_mov_b64 exec, s[32:33]")
    k3_bulk("A")
    e("  s_mov_b64 exec, s[36:37]")
    e(f"  s_waitcnt vmcnt({NSPLIT} + 16)")
    e(f"  v_mov_b32 v4, v{MB}")
    for s in range(1, NSPLIT):
        e(f"  v_max_f32 v4, v4, v{MB+2*s}")
    e("  v_mov_b32 v5, 0     ; L")
    e("  v_mov_b32 v6, 0     ; O")
    for s in range(NSPLIT):
        e(f"  v_sub_f32 v7, v{MB+2*s}, v4")
        e("  v_exp_f32 v7, v7")
        e("  s_nop 0")
        e(f"  v_fmac_f32 v5, v7, v{MB+2*s+1}")
        if s == 0:
            e("  s_waitcnt vmcnt(16)")
        e(f"  v_fmac_f32 v6, v7, v{OB+s}")
    e("  v_rcp_f32 v5, v5")
    e("  s_nop 0")
    e("  v_mul_f32 v6, v6, v5")
    rne(6, 6, 7)
    e("  s_branch K3_VECST")
    e("K3_FFN:")
    e("  v_lshlrev_b32 v3, 1, v0")
    e("  s_lshl_b32 s24, s20, 1")
    e(f"  s_add_u32 s25, s24, {WS_Y + 6144*2}")
    e(f"  s_add_u32 s26, s24, {WS_Y + 7680*2}")
    e("  buffer_load_ushort v4, v3, s[12:15], s25 offen")
    e("  buffer_load_ushort v5, v3, s[12:15], s26 offen")
    e("  s_mov_b64 exec, s[32:33]")
    k3_bulk("B")
    e("  s_mov_b64 exec, s[36:37]")
    e("  s_waitcnt vmcnt(16)")
    e("  v_lshlrev_b32 v4, 16, v4   ; gate")
    e("  v_lshlrev_b32 v5, 16, v5   ; up")
    e(f"  v_mul_f32 v6, {f2u(-LOG2E):#x}, v4")
    e("  v_exp_f32 v6, v6")
    e("  s_nop 0")
    e("  v_add_f32 v6, 1.0, v6")
    e("  v_rcp_f32 v6, v6")
    e("  s_nop 0")
    e("  v_mul_f32 v6, v4, v6       ; silu")
    rne(6, 6, 7)
    e("  v_mul_f32 v6, v6, v5")
    rne(6, 6, 7)
    e("K3_VECST:")
    e("  v_lshlrev_b32 v3, 2, v0")
    e("  ds_write_b32 v3, v6")
    e("  s_branch K3_VECDONE")
    e("K3_LATEBULK:")
    e("  s_mov_b64 exec, s[32:33]")
    k3_bulk("C")
    e("K3_VECDONE:")
    e("  s_mov_b64 exec, s[32:33]")
    e("  s_waitcnt lgkmcnt(0)")
    e("  s_barrier")
    e("  v_cmp_gt_u32 vcc, 240, v0")
    e("  s_and_saveexec_b64 s[32:33], vcc")
    e("  s_cbranch_execz K3_GDONE")
    e("  v_cmp_le_u32 vcc, 80, v0")
    e("  s_nop 1")
    e("  v_cndmask_b32 v2, 0, 4, vcc")
    e("  v_cmp_le_u32 vcc, 160, v0")
    e("  s_nop 1")
    e("  v_cndmask_b32 v2, v2, 8, vcc   ; rb*4")
    XB = 80
    for st in range(16):
        e(f"  ds_read_b32 v{XB+st}, v2 offset:{12*st}")
    for c in range(8):
        e(f"  v_mov_b32 v{4+c}, 0")
    e("  s_waitcnt vmcnt(0) lgkmcnt(0)")
    for st in range(16):
        for c in range(4):
            w = WB + 4*st + c
            e(f"  v_lshlrev_b32 v12, 16, v{w}")
            e(f"  v_and_b32 v13, s30, v{w}")
            e(f"  v_fmac_f32 v{4+2*c}, v12, v{XB+st}")
            e(f"  v_fmac_f32 v{5+2*c}, v13, v{XB+st}")
    e("  v_lshlrev_b32 v2, 5, v0")
    e("  ds_write_b128 v2, v[4:7] offset:256")
    e("  ds_write_b128 v2, v[8:11] offset:272")
    e("K3_GDONE:")
    e("  s_mov_b64 exec, s[32:33]")
    e("  s_waitcnt lgkmcnt(0)")
    e("  s_barrier")
    e("  v_lshlrev_b32 v2, 2, v0")
    for k in range(3):
        for rb in range(3):
            e(f"  ds_read_b32 v{16+3*k+rb}, v2 offset:{256 + rb*2560 + k*1024}")
    e("  s_waitcnt lgkmcnt(0)")
    for k in range(3):
        e(f"  v_add_f32 v{16+3*k}, v{16+3*k}, v{17+3*k}")
        e(f"  v_add_f32 v{16+3*k}, v{16+3*k}, v{18+3*k}")
    e("  s_mul_i32 s24, s2, 2560")
    e(f"  s_add_u32 s24, s24, {WS_PART}")
    e("  buffer_store_dword v16, v2, s[12:15], s24 offen")
    e("  buffer_store_dword v19, v2, s[12:15], s24 offen offset:1024")
    e("  v_cmp_gt_u32 vcc, 128, v0")
    e("  s_and_saveexec_b64 s[32:33], vcc")
    e("  s_cbranch_execz K3_END")
    e("  buffer_store_dword v22, v2, s[12:15], s24 offen offset:2048")
    e("K3_END:")
    e("  s_endpgm")
    desc(K3, 128)

K4 = "final_kernel"
K4_WGS = 10
K4_LDS = 2 * 4 * 64 * 4
def gen_k4():
    header(K4)
    e(f"  s_cmp_ge_u32 s2, {K4_WGS}")
    e("  s_cbranch_scc1 K4_END")
    e("  s_load_dwordx2 s[4:5], s[0:1], 0      ; x")
    e("  s_load_dwordx2 s[6:7], s[0:1], 72     ; out")
    e("  s_load_dwordx2 s[8:9], s[0:1], 88     ; ws")
    e("  v_and_b32 v1, 63, v0")
    e("  v_lshrrev_b32 v2, 6, v0")
    e("  s_nop 0")
    e("  v_readfirstlane_b32 s20, v2")
    e("  s_waitcnt lgkmcnt(0)")
    srd(12, 8, WS_BYTES)
    srd(16, 4, 1280)
    srd(24, 6, 1280)
    e("  s_lshl_b32 s21, s2, 8")
    e("  v_lshl_add_u32 v3, v1, 2, s21")
    e("  s_mul_i32 s22, s20, 32*2560")
    e(f"  s_add_u32 s22, s22, {WS_PART}")
    for k in range(32):
        e(f"  buffer_load_dword v{16+k}, v3, s[12:15], s22 offen")
        e("  s_add_u32 s22, s22, 2560")
    e("  s_mul_i32 s22, s20, 8*2560")
    e(f"  s_add_u32 s22, s22, {WS_PART + 128*2560}")
    for k in range(8):
        e(f"  buffer_load_dword v{48+k}, v3, s[12:15], s22 offen")
        e("  s_add_u32 s22, s22, 2560")
    e("  s_waitcnt vmcnt(8)")
    for k in range(1, 32):
        e(f"  v_add_f32 v16, v16, v{16+k}")
    e("  s_waitcnt vmcnt(0)")
    for k in range(1, 8):
        e(f"  v_add_f32 v48, v48, v{48+k}")
    e("  v_lshlrev_b32 v4, 2, v0    ; (wave*64+lane)*4")
    e("  ds_write_b32 v4, v16")
    e("  ds_write_b32 v4, v48 offset:1024")
    e("  s_waitcnt lgkmcnt(0)")
    e("  s_barrier")
    e("  v_cmp_gt_u32 vcc, 64, v0")
    e("  s_and_saveexec_b64 s[32:33], vcc")
    e("  s_cbranch_execz K4_END")
    for w in range(4):
        e(f"  ds_read_b32 v{16+w}, v4 offset:{256*w}")
        e(f"  ds_read_b32 v{20+w}, v4 offset:{1024+256*w}")
    e("  s_lshl_b32 s21, s2, 7")
    e("  v_lshl_add_u32 v5, v1, 1, s21")
    e("  buffer_load_ushort v6, v5, s[16:19], 0 offen")
    e("  s_waitcnt lgkmcnt(0)")
    e("  v_add_f32 v16, v16, v17")
    e("  v_add_f32 v18, v18, v19")
    e("  v_add_f32 v16, v16, v18    ; s")
    e("  v_add_f32 v20, v20, v21")
    e("  v_add_f32 v22, v22, v23")
    e("  v_add_f32 v20, v20, v22    ; f")
    rne(16, 16, 7)
    rne(20, 20, 7)
    e(f"  v_mul_f32 v8, {f2u(-LOG2E):#x}, v20")
    e("  v_exp_f32 v8, v8")
    e("  s_nop 0")
    e("  v_add_f32 v8, 1.0, v8")
    e("  v_rcp_f32 v8, v8")
    e("  s_nop 0")
    e("  v_mul_f32 v8, v20, v8")
    rne(8, 8, 7)
    e("  v_mul_f32 v8, v16, v8")
    rne(8, 8, 7)
    e("  s_waitcnt vmcnt(0)")
    e("  v_lshlrev_b32 v6, 16, v6")
    e("  v_add_f32 v8, v6, v8")
    e("  v_cvt_pk_bf16_f32 v8, v8, v8")
    e("  buffer_store_short v8, v5, s[24:27], 0 offen")
    e("K4_END:")
    e("  s_endpgm")
    desc(K4, 64)

top = []
top.append(f"; @launch kernel={K1} grid=({K1_WGS},1,1) block=(256,1,1) lds={K1_LDS}")
top.append(f"; @launch kernel={K2} grid=({K2_WGS},1,1) block=(256,1,1) lds={K2_LDS}")
top.append(f"; @launch kernel={K3} grid=({K3_WGS},1,1) block=(256,1,1) lds={K3_LDS}")
top.append(f"; @launch kernel={K4} grid=({K4_WGS},1,1) block=(256,1,1) lds={K4_LDS}")
top.append('.amdgcn_target "amdgcn-amd-amdhsa--gfx950"')
top.append(".text")
gen_k1(); gen_k2(); gen_k3(); gen_k4()
src = "\n".join(top) + "\n" + "\n".join(L) + "\n" + '.section .rodata,"a"\n' + "\n".join(KD) + "\n"
open(OUT, "w").write(src)
print("wrote", OUT, len(src), "bytes")
```
